```python
import torch

def _softmax(x, axis=-1):
    return torch.softmax(x, dim=axis)
def _gelu(x):
    return torch.nn.functional.gelu(x, approximate="tanh")
def _silu(x):
    return torch.nn.functional.silu(x)
def _sigmoid(x):
    return torch.sigmoid(x)
def _layernorm(x, axis=-1, eps=1e-5):
    m = x.mean(dim=axis, keepdim=True)
    v = x.var(dim=axis, keepdim=True, unbiased=False)
    return (x - m) / torch.sqrt(v + eps)
def _scatter_add(tgt, idx, src, axis=0):
    return tgt.clone().index_add_(axis, idx, src)
def _segment_sum(src, seg, n):
    out = torch.zeros((n,) + src.shape[1:], dtype=src.dtype)
    return out.index_add_(0, seg, src)
def _pad(x, pw):
    flat = tuple(v for pair in reversed(pw) for v in pair)
    return torch.nn.functional.pad(x, flat)

kernel_name = 'gated_mix__ssm_conv_s4d__dense_activation_squared_relu__prompt'

def setup_inputs():

    _w = (lambda a: (lambda t: t.to(torch.bfloat16) if t.is_floating_point() else t)(torch.as_tensor(a)))
    def _A_setup():
        Bsz, L, D, N = 1, 2048, 640, 128
        return {
            "u": _w((lambda *s: torch.randn(*s, dtype=torch.bfloat16) * 0.05)(Bsz, L, D)),
            "log_A_real": _w((lambda *s: torch.randn(*s, dtype=torch.bfloat16) * 6.4)(D, N) * 0.5),
            "A_imag": _w((lambda *s: torch.randn(*s, dtype=torch.bfloat16) * 0.1)(D, N) * 3.14),
            "C_real": _w((lambda *s: torch.randn(*s, dtype=torch.bfloat16) * 0.4)(D, N) / N ** 0.5),
            "C_imag": _w((lambda *s: torch.randn(*s, dtype=torch.bfloat16) * 0.4)(D, N) / N ** 0.5),
            "log_dt": _w((lambda *s: torch.randn(*s, dtype=torch.bfloat16) * 0.1)(D) * 0.5 - 4.0),
            "D_skip": _w((lambda *s: torch.randn(*s, dtype=torch.bfloat16) * 0.1)(D)),
        }
    _A_in = _A_setup()

    def _B_setup():
        B, S, D, F = 1, 2048, 640, 1728
        return {
            "x": _w((lambda *s: torch.randn(*s, dtype=torch.bfloat16) * 0.05)(B, S, D)),
            "w1": _w((lambda *s: torch.randn(*s, dtype=torch.bfloat16) * 0.05)(D, F)),
            "b1": _w((lambda *s: torch.randn(*s, dtype=torch.bfloat16) * 0.05)(F)),
            "w2": _w((lambda *s: torch.randn(*s, dtype=torch.bfloat16) * 0.05)(F, D)),
            "b2": _w((lambda *s: torch.randn(*s, dtype=torch.bfloat16) * 0.05)(D)),
        }
    _B_in = _B_setup()

    return {
        "A_u": _A_in["u"],
        "A_log_A_real": _A_in["log_A_real"],
        "A_A_imag": _A_in["A_imag"],
        "A_C_real": _A_in["C_real"],
        "A_C_imag": _A_in["C_imag"],
        "A_log_dt": _A_in["log_dt"],
        "A_D_skip": _A_in["D_skip"],
        "B_x": _B_in["x"],
        "B_w1": _B_in["w1"],
        "B_b1": _B_in["b1"],
        "B_w2": _B_in["w2"],
        "B_b2": _B_in["b2"],
        "gate_w": _w((lambda *s: torch.randn(*s, dtype=torch.bfloat16) * 0.05)(640) * 16.0),
    }

def reference(A_u, A_log_A_real, A_A_imag, A_C_real, A_C_imag, A_log_dt, A_D_skip, B_x, B_w1, B_b1, B_w2, B_b2, gate_w):
    def _A_ref(u, log_A_real, A_imag, C_real, C_imag, log_dt, D_skip):
        L = u.shape[1]
        dt = torch.exp(log_dt)
        A = -torch.exp(log_A_real) + 1j * A_imag
        C = (C_real + 1j * C_imag) * dt[:, None]
        pos = (lambda x, dt: x.to(dt))(torch.arange(L), log_dt.dtype)
        P = torch.exp((A * dt[:, None])[:, :, None] * pos[None, None, :])
        K = 2.0 * torch.einsum("dn,dnl->dl", C, P).real
        L2 = 2 * L
        u_t = (lambda x, *d: x.permute(*d))(u, 0, 2, 1)
        Kf = (lambda x, *a, **k: torch.fft.rfft(x.float(), *a, **k))(K, L2)
        Uf = (lambda x, *a, **k: torch.fft.rfft(x.float(), *a, **k))(u_t, L2)
        y = (lambda x, *a, **k: torch.fft.irfft(x, *a, **k).to(torch.bfloat16))(Uf * Kf[None, :, :], L2)[:, :, :L]
        y = (lambda x, *d: x.permute(*d))(y, 0, 2, 1)
        return y + u * D_skip[None, None, :]

    def _B_ref(x, w1, b1, w2, b2):
        h = torch.einsum("bsd,df->bsf", x, w1) + b1
        zero = torch.zeros_like(h)
        r = torch.where(h > zero, h, zero)
        h = r * r
        out = torch.einsum("bsf,fd->bsd", h, w2) + b2
        return out

    x = A_u
    g = _sigmoid((x * gate_w).sum(-1, keepdims=True))
    a = _A_ref(x, A_log_A_real, A_A_imag, A_C_real, A_C_imag, A_log_dt, A_D_skip)
    b = _B_ref(x, B_w1, B_b1, B_w2, B_b2)
    return g * a + (1 - g) * b
```

```python
class Asm:
    def __init__(self):
        self.lines = []
        self._lab = 0
    def __call__(self, s, *a):
        for ln in s.strip("\n").split("\n"):
            ln = ln.strip()
            if not ln: continue
            if ln.endswith(":"): self.lines.append(ln)
            else: self.lines.append("    " + ln)
    def c(self, s):
        self.lines.append("    ; " + s)
    def label(self, name):
        self.lines.append(name + ":")
    def newlabel(self, base="L"):
        self._lab += 1
        return f"{base}_{self._lab}"
    def nop(self, n):
        while n > 0:
            k = min(n, 16)
            self.lines.append(f"    s_nop {k-1}")
            n -= k
    def text(self):
        return "\n".join(self.lines) + "\n"

def vr(b, n=1):
    return f"v{b}" if n == 1 else f"v[{b}:{b+n-1}]"
def sr(b, n=1):
    return f"s{b}" if n == 1 else f"s[{b}:{b+n-1}]"

def srd(a, dst, base_lo, size, add=0):
    if add:
        a(f"s_add_u32 s{dst}, s{base_lo}, {add}")
        a(f"s_addc_u32 s{dst+1}, s{base_lo+1}, 0")
    else:
        a(f"s_mov_b32 s{dst}, s{base_lo}")
        a(f"s_mov_b32 s{dst+1}, s{base_lo+1}")
    a(f"s_mov_b32 s{dst+2}, {size}")
    a(f"s_mov_b32 s{dst+3}, 0x00020000")

class VM:
    def __init__(self, a):
        self.a = a
        self.q = []
    def issue(self, tag):
        self.q.append(tag)
    def wait_for(self, tags, emit=True):
        if isinstance(tags, str) or not hasattr(tags, '__iter__') or isinstance(tags, tuple): tags = [tags]
        idx = -1
        for i, t in enumerate(self.q):
            if t in tags: idx = i
        if idx < 0: return None
        n = len(self.q) - 1 - idx
        self.q = self.q[idx+1:]
        n = min(n, 63)
        if emit: self.a(f"s_waitcnt vmcnt({n})")
        return n
    def wait_all(self):
        self.q = []
        self.a("s_waitcnt vmcnt(0)")

def kernel_header(name):
    return f""".globl {name}
.p2align 8
.type {name},@function
{name}:
"""
def kernel_desc(name, vgpr, sgpr=102, accum=None):
    if accum is None: accum = (vgpr + 3)//4*4
    return f""".p2align 6
.amdhsa_kernel {name}
  .amdhsa_next_free_vgpr {vgpr}
  .amdhsa_next_free_sgpr {sgpr}
  .amdhsa_accum_offset {accum}
  .amdhsa_group_segment_fixed_size 0
  .amdhsa_kernarg_size 128
  .amdhsa_user_sgpr_count 2
  .amdhsa_user_sgpr_kernarg_segment_ptr 1
  .amdhsa_system_sgpr_workgroup_id_x 1
.end_amdhsa_kernel
"""
```

```python
import sys
from asmlib import *

L, D, F, N = 2048, 640, 1728, 128
UT_RS = 4224
WS_UT   = 0x0
WS_H    = 0x300000
WS_W2F  = 0xA00000
WS_AT   = 0xD00000
WS_G    = 0x1000000
WS_FLAG = 0x1010000
SZ_X  = L*D*2
SZ_UT = D*UT_RS
SZ_H  = 128*54*1024
SZ_W2F = 8*54*5*1024
SZ_AT = D*4096
SZ_W  = D*F*2
OOB = 0x40000000

P_U, P_LAR, P_AIM, P_CR, P_CI, P_LDT, P_DSK, P_BX, P_W1, P_B1, P_W2, P_B2, P_GW, P_OUT, P_DBG, P_WS = [16+2*i for i in range(16)]
S_WAVE = 3

def prologue(a, name, dummy, pf_blocks=1):
    import os
    a("s_getpc_b64 s[12:13]")
    a("s_load_dwordx16 s[16:31], s[0:1], 0")
    a("s_load_dwordx16 s[32:47], s[0:1], 64")
    a("v_lshrrev_b32 v1, 6, v0")
    if os.environ.get("NOPF") != "1":
        a("v_lshlrev_b32 v2, 7, v0")
        for b in range(pf_blocks):
            a(f"v_min_u32 v3, {name}_end-{name}-8, v2")
            a(f"global_load_dword v{dummy}, v3, s[12:13]")
            if b + 1 < pf_blocks: a("v_add_u32 v2, 0x8000, v2")
    a("v_and_b32 v0, 63, v0")
    a("v_readfirstlane_b32 s3, v1")
    a("s_waitcnt lgkmcnt(0)")

WS_TS = 0x1100000
class TS:
    def __init__(self, a, vreg):
        import os
        self.a = a; self.n = 0; self.on = os.environ.get("TS") == "1"; self.v = vreg; self.pend = None
        if self.on: a(f"v_mov_b32 v{vreg}, 0")
    def commit(self):
        if not self.on or self.pend is None: return
        self.a(f"v_writelane_b32 v{self.v}, s76, {self.pend}")
        self.pend = None
    def stamp(self, real=False, wait=False):
        if not self.on: return
        a = self.a
        if self.pend is not None:
            a("s_waitcnt lgkmcnt(0)"); self.commit()
        a("s_memrealtime s[76:77]" if real else "s_memtime s[76:77]")
        self.pend = self.n; self.n += 1
    def flush(self, slot_sreg=2, base=0):
        if not self.on: return
        a = self.a
        a("s_waitcnt lgkmcnt(0)"); self.commit()
        srd(a, 72, P_WS, 0x100000, add=WS_TS + base)
        a(f"s_lshl_b32 s100, s{slot_sreg}, 2")
        a(f"s_add_u32 s100, s100, s{S_WAVE}")
        a("s_lshl_b32 s100, s100, 8")
        a("v_lshlrev_b32 v1, 2, v0")
        a(f"buffer_store_dword v{self.v}, v1, s[72:75], s100 offen")

def div10(a, dst_q, dst_r, src, tmp):
    a(f"v_mul_u32_u24 v{dst_q}, 6554, v{src}")
    a(f"v_lshrrev_b32 v{dst_q}, 16, v{dst_q}")
    a(f"v_mul_u32_u24 v{tmp}, 10, v{dst_q}")
    a(f"v_sub_u32 v{dst_r}, v{src}, v{tmp}")

def role_T(a, s_m, s_c, LT1, LT2, st_flags=""):
    srd(a, 48, P_U, SZ_X)
    srd(a, 52, P_WS, SZ_UT, add=WS_UT)
    a(f"s_mul_i32 s4, s{s_m}, {64*1280}")
    a(f"s_mul_i32 s5, s{s_c}, 160")
    a("s_add_u32 s4, s4, s5")
    for z in range(3):
        a(f"s_lshl_b32 s6, s{S_WAVE}, 6")
        a(f"s_add_u32 s6, s6, {256*z}")
        a("v_add_u32 v1, s6, v0")
        div10(a, 2, 3, 1, 4)
        a("v_mul_u32_u24 v2, 1280, v2")
        a("v_lshlrev_b32 v3, 4, v3")
        a("v_add_u32 v2, v2, v3")
        if z == 2:
            a("v_mov_b32 v5, 0x40000000")
            a("v_cmp_gt_u32 vcc, 640, v1")
            a.nop(2)
            a("v_cndmask_b32 v2, v5, v2, vcc")
        a(f"s_lshl_b32 s7, s{S_WAVE}, 10")
        a(f"s_add_u32 s7, s7, {LT1 + 4096*z}")
        a("s_mov_b32 m0, s7")
        a.nop(1)
        a("buffer_load_dwordx4 v2, s[48:51], s4 offen lds")
    a("v_lshrrev_b32 v1, 4, v0")
    a("v_bfe_u32 v2, v0, 2, 2")
    a("v_and_b32 v3, 3, v0")
    a("v_lshlrev_b32 v4, 2, v1")
    a("v_sub_u32 v4, v4, v2")
    a(f"s_lshl_b32 s6, s{S_WAVE}, 4")
    a("s_add_u32 s6, s6, 3")
    a("v_add_u32 v4, s6, v4")
    a("v_mul_u32_u24 v4, 160, v4")
    a("v_lshlrev_b32 v3, 3, v3")
    a("v_add_u32 v4, v4, v3")
    a(f"v_add_u32 v4, {LT1}, v4")
    a("v_and_b32 v5, 15, v0")
    a("v_mul_u32_u24 v5, 144, v5")
    a("v_lshlrev_b32 v6, 3, v1")
    a("v_sub_u32 v5, v5, v6")
    a(f"s_lshl_b32 s6, s{S_WAVE}, 5")
    a(f"s_sub_u32 s6, {LT2 + 120}, s6")
    a("v_add_u32 v5, s6, v5")
    a("s_waitcnt vmcnt(0)")
    a("s_barrier")
    for t in range(5):
        a(f"ds_read_b64_tr_b16 v[{8+2*t}:{9+2*t}], v4 offset:{32*t}")
    for t in range(5):
        a(f"s_waitcnt lgkmcnt({4-t})")
        a(f"ds_write_b64 v5, v[{8+2*t}:{9+2*t}] offset:{2304*t}")
    a("v_lshrrev_b32 v1, 3, v0")
    a("v_and_b32 v2, 7, v0")
    a("v_mul_u32_u24 v3, 144, v1")
    a("v_lshlrev_b32 v2, 4, v2")
    a("v_add_u32 v3, v3, v2")
    a(f"s_mul_i32 s6, s{S_WAVE}, 1152")
    a(f"s_add_u32 s6, s6, {LT2}")
    a("v_add_u32 v3, s6, v3")
    a(f"v_mul_u32_u24 v1, {UT_RS}, v1")
    a("v_add_u32 v1, v1, v2")
    a(f"s_mul_i32 s6, s{s_c}, {80*UT_RS}")
    a(f"s_mul_i32 s7, s{S_WAVE}, {8*UT_RS}")
    a("s_add_u32 s6, s6, s7")
    a(f"s_lshl_b32 s7, s{s_m}, 7")
    a("s_sub_u32 s6, s6, s7")
    a("s_add_u32 s6, s6, 3968")
    a("s_waitcnt lgkmcnt(0)")
    a("s_barrier")
    a("ds_read_b128 v[8:11], v3")
    a(f"ds_read_b128 v[12:15], v3 offset:{4*1152}")
    lab = a.newlabel("T_skip")
    a("s_waitcnt lgkmcnt(1)")
    a(f"buffer_store_dwordx4 v[8:11], v1, s[52:55], s6 offen {st_flags}")
    a(f"s_add_u32 s6, s6, {32*UT_RS}")
    a("s_waitcnt lgkmcnt(0)")
    a(f"buffer_store_dwordx4 v[12:15], v1, s[52:55], s6 offen {st_flags}")
    a(f"s_cmp_ge_u32 s{S_WAVE}, 2")
    a(f"s_cbranch_scc1 {lab}")
    a(f"ds_read_b128 v[16:19], v3 offset:{8*1152}")
    a(f"s_add_u32 s6, s6, {32*UT_RS}")
    a("s_waitcnt lgkmcnt(0)")
    a(f"buffer_store_dwordx4 v[16:19], v1, s[52:55], s6 offen {st_flags}")
    a.label(lab)
    lab2 = a.newlabel("T_nz")
    a(f"s_cmp_lg_u32 s{s_m}, 0")
    a(f"s_cbranch_scc1 {lab2}")
    a(f"s_lshl_b32 s6, s{S_WAVE}, 6")
    a("v_add_u32 v1, s6, v0")
    a("v_lshrrev_b32 v2, 1, v1")
    a(f"v_mul_u32_u24 v2, {UT_RS}, v2")
    a("v_and_b32 v3, 1, v1")
    a("v_lshlrev_b32 v3, 4, v3")
    a("v_add_u32 v2, v2, v3")
    a("v_mov_b32 v5, 0x40000000")
    a("v_cmp_gt_u32 vcc, 160, v1")
    a("v_mov_b32 v20, 0")
    a("v_mov_b32 v21, 0")
    a("v_cndmask_b32 v2, v5, v2, vcc")
    a("v_mov_b32 v22, 0")
    a("v_mov_b32 v23, 0")
    a(f"s_mul_i32 s6, s{s_c}, {80*UT_RS}")
    a("s_add_u32 s6, s6, 4096")
    a(f"buffer_store_dwordx4 v[20:23], v2, s[52:55], s6 offen {st_flags}")
    a.label(lab2)

def role_W2R(a, s_u, LW, st_flags=""):
    srd(a, 56, P_W2, SZ_W)
    srd(a, 60, P_WS, SZ_W2F, add=WS_W2F)
    a(f"s_mul_i32 s4, s{s_u}, 1214")
    a("s_lshr_b32 s4, s4, 16")
    a("s_mul_i32 s5, s4, 54")
    a(f"s_sub_u32 s5, s{s_u}, s5")
    a(f"s_mul_i32 s6, s5, {32*1280}")
    a("s_mul_i32 s7, s4, 160")
    a("s_add_u32 s6, s6, s7")
    a(f"s_mul_i32 s8, s{S_WAVE}, 5120")
    a(f"s_add_u32 s8, s8, {LW}")
    for i in range(5):
        a(f"v_add_u32 v1, {64*i}, v0")
        div10(a, 2, 3, 1, 4)
        a("v_mul_u32_u24 v2, 1280, v2")
        a("v_lshlrev_b32 v3, 4, v3")
        a("v_add_u32 v2, v2, v3")
        a(f"s_add_u32 s9, s8, {1024*i}")
        a("s_mov_b32 m0, s9")
        a.nop(1)
        a("buffer_load_dwordx4 v2, s[56:59], s6 offen lds")
    a("v_lshrrev_b32 v1, 4, v0")
    a("v_bfe_u32 v2, v0, 2, 2")
    a("v_and_b32 v3, 3, v0")
    a("v_lshl_add_u32 v4, v1, 3, v2")
    a("v_mul_u32_u24 v4, 160, v4")
    a("v_lshl_add_u32 v4, v3, 3, v4")
    a("v_add_u32 v4, s8, v4")
    a("v_lshlrev_b32 v5, 4, v0")
    a(f"s_mul_i32 s9, s{s_u}, 5120")
    a("s_waitcnt vmcnt(0)")
    for t in range(5):
        a(f"ds_read_b64_tr_b16 v[{8+4*t}:{9+4*t}], v4 offset:{32*t}")
        a(f"ds_read_b64_tr_b16 v[{10+4*t}:{11+4*t}], v4 offset:{640+32*t}")
    for t in range(5):
        a(f"s_waitcnt lgkmcnt({8-2*t})")
        a(f"buffer_store_dwordx4 v[{8+4*t}:{11+4*t}], v5, s[60:63], s9 offen offset:{1024*t} {st_flags}" if 1024*t < 4096 else
          f"buffer_store_dwordx4 v[{8+4*t}:{11+4*t}], v6, s[60:63], s9 offen {st_flags}")
        if t == 3: a("v_add_u32 v6, 4096, v5")

def role_gate(a, s_row0, ngroups, st_flags=""):
    srd(a, 48, P_U, SZ_X)
    srd(a, 64, P_GW, D*2)
    srd(a, 68, P_WS, L*4, add=WS_G)
    a("v_and_b32 v1, 15, v0")
    a("v_lshlrev_b32 v1, 4, v1")
    a("v_lshrrev_b32 v2, 4, v0")
    a("v_mul_u32_u24 v3, 1280, v2")
    a("v_add_u32 v3, v3, v1")
    for z in range(5):
        a(f"buffer_load_dwordx4 v[{40+4*z}:{43+4*z}], v1, s[64:67], 0 offen offset:{256*z}")
    a(f"s_mul_i32 s4, s{s_row0}, 1280")
    for g in range(ngroups):
        for z in range(5):
            a(f"buffer_load_dwordx4 v[{8+4*z}:{11+4*z}], v3, s[48:51], s4 offen offset:{256*z}")
        if g == 0:
            a("s_waitcnt vmcnt(5)")
            for i in range(20):
                a(f"v_lshlrev_b32 v{60+2*i}, 16, v{40+i}")
                a(f"v_and_b32 v{61+2*i}, 0xffff0000, v{40+i}")
        a("v_mov_b32 v4, 0")
        a("v_mov_b32 v5, 0")
        a("s_waitcnt vmcnt(0)")
        for i in range(20):
            a(f"v_lshlrev_b32 v30, 16, v{8+i}")
            a(f"v_and_b32 v31, 0xffff0000, v{8+i}")
            a(f"v_mul_f32 v30, v30, v{60+2*i}")
            a(f"v_mul_f32 v31, v31, v{61+2*i}")
            a("v_cvt_pk_bf16_f32 v32, v30, v31")
            a("v_lshlrev_b32 v30, 16, v32")
            a("v_and_b32 v31, 0xffff0000, v32")
            a("v_add_f32 v4, v4, v30")
            a("v_add_f32 v5, v5, v31")
        a("v_add_f32 v4, v4, v5")
        for sh in (8, 4, 2, 1):
            a.nop(2)
            a(f"v_add_f32_dpp v4, v4, v4 row_ror:{sh} row_mask:0xf bank_mask:0xf")
        a("v_cvt_pk_bf16_f32 v4, v4, v4")
        a("v_lshlrev_b32 v4, 16, v4")
        a("v_mul_f32 v5, 0xbfb8aa3b, v4")
        a("v_exp_f32 v5, v5")
        a.nop(1)
        a("v_add_f32 v5, 1.0, v5")
        a("v_rcp_f32 v5, v5")
        a.nop(1)
        a("v_cvt_pk_bf16_f32 v5, v5, v5")
        a("v_lshlrev_b32 v5, 16, v5")
        a("v_lshlrev_b32 v6, 2, v2")
        a("v_mov_b32 v7, 0x40000000")
        a("v_cmp_eq_u32 vcc, 0, v1")
        a.nop(2)
        a("v_cndmask_b32 v6, v7, v6, vcc")
        a(f"s_lshl_b32 s5, s{s_row0}, 2")
        a(f"s_add_u32 s5, s5, {16*g}")
        a(f"buffer_store_dword v5, v6, s[68:71], s5 offen {st_flags}")
        a(f"s_add_u32 s4, s4, {4*1280}")

def k_aux(a):
    prologue(a, "aux_kernel", 127)
    a("s_cmp_ge_u32 s2, 256")
    a("s_cbranch_scc1 aux_not_T")
    a("s_lshr_b32 s10, s2, 3")
    a("s_and_b32 s11, s2, 7")
    role_T(a, 10, 11, 0, 12288)
    a("s_endpgm")
    a.label("aux_not_T")
    a("s_cmp_ge_u32 s2, 364")
    a("s_cbranch_scc1 aux_not_W")
    a("s_sub_u32 s10, s2, 256")
    a("s_lshl_b32 s10, s10, 2")
    a(f"s_add_u32 s10, s10, s{S_WAVE}")
    role_W2R(a, 10, 0)
    a("s_endpgm")
    a.label("aux_not_W")
    a("s_cmp_ge_u32 s2, 396")
    a("s_cbranch_scc1 aux_end")
    a("s_sub_u32 s10, s2, 364")
    a("s_lshl_b32 s10, s10, 6")
    a(f"s_lshl_b32 s11, s{S_WAVE}, 4")
    a("s_add_u32 s10, s10, s11")
    role_gate(a, 10, 4)
    a.label("aux_end")
    a("s_endpgm")

HEADER = open("gated_mix__ssm_conv_s4d__dense_activation_squared_relu__prompt.s.ref").read().split("; Override")[0]

def build(kernels, fn):
    s = HEADER
    for (name, fnc, grid, lds, vg) in kernels:
        s += f"; @launch kernel={name} grid=({grid},1,1) block=(256,1,1) lds={lds}\n"
    s += '.amdgcn_target "amdgcn-amd-amdhsa--gfx950"\n.text\n'
    for (name, fnc, grid, lds, vg) in kernels:
        a = Asm()
        a._lab = hash(name) % 1000 * 1000
        fnc(a)
        s += kernel_header(name) + a.text() + f"{name}_end:\n"
    s += '.section .rodata,"a"\n'
    for (name, fnc, grid, lds, vg) in kernels:
        s += kernel_desc(name, vg)
    open(fn, "w").write(s)

if __name__ == "__main__":
    build([("aux_kernel", k_aux, 396, 24576, 128)], "k1.s")
```

```python
from gen import *

XR = 0
W1R = 49152
ACC = 64
XF = [32, 40]
WF = [128, 160]
VA_W = 8
VA_X = 16
V_XD = 18
V_WD = 19
V_BIAS = 192

DUMMY = 209
def role_G1(a, s_rb, s_cb, st_flags="", touch=False, s_rbl=None, s_cbl=None):
    srd(a, 48, P_U, SZ_X)
    srd(a, 52, P_W1, SZ_W)
    srd(a, 56, P_B1, F*2)
    srd(a, 60, P_WS, SZ_H, add=WS_H)
    vm = VM(a)
    ts = TS(a, 210); ts.stamp(real=True); ts.stamp()
    a(f"s_lshl_b32 s4, s{s_cb}, 3")
    a("s_min_u32 s4, s4, 100")
    a("v_lshrrev_b32 v1, 4, v0")
    a("v_lshlrev_b32 v2, 3, v1")
    a("s_lshl_b32 s5, s4, 5")
    for t in range(8):
        a(f"buffer_load_dwordx2 v[{V_BIAS+2*t}:{V_BIAS+2*t+1}], v2, s[56:59], s5 offen offset:{32*t}")
        vm.issue("bias")
    a("v_lshrrev_b32 v3, 3, v0")
    a("v_and_b32 v4, 7, v0")
    a("v_xor_b32 v4, v4, v3")
    a("v_lshlrev_b32 v4, 4, v4")
    a("v_mul_u32_u24 v3, 1280, v3")
    a(f"v_add_u32 v{V_XD}, v3, v4")
    a(f"s_lshl_b32 s6, s{s_rb}, 7")
    a(f"s_lshl_b32 s7, s{S_WAVE}, 5")
    a("s_add_u32 s6, s6, s7")
    a("s_mul_i32 s6, s6, 1280")
    a(f"s_lshl_b32 s7, s{S_WAVE}, 12")
    if XR: a(f"s_add_u32 s7, s7, {XR}")
    a("v_lshrrev_b32 v3, 4, v0")
    a(f"s_and_b32 s8, s{S_WAVE}, 1")
    a("s_lshl_b32 s8, s8, 2")
    a("v_or_b32 v4, s8, v3")
    a("v_bfe_u32 v5, v0, 1, 3")
    a("v_xor_b32 v5, v5, v4")
    a("v_lshlrev_b32 v5, 5, v5")
    a("v_and_b32 v6, 1, v0")
    a("v_lshl_add_u32 v5, v6, 4, v5")
    a("v_mul_u32_u24 v3, 3456, v3")
    a(f"v_add_u32 v{V_WD}, v3, v5")
    a(f"s_mul_i32 s8, s{S_WAVE}, {8*3456}")
    a("s_add_u32 s8, s8, s5")
    a(f"s_lshl_b32 s9, s{S_WAVE}, 11")
    a(f"s_add_u32 s9, s9, {W1R}")

    def dma_x(j):
        for ii in range(4):
            a(f"s_add_u32 s10, s7, {(j%3)*16384 + ii*1024}")
            a("s_mov_b32 m0, s10")
            a(f"s_add_u32 s11, s6, {ii*8*1280 + j*128}")
            a(f"buffer_load_dwordx4 v{V_XD}, s[48:51], s11 offen lds")
            vm.issue(("x", j))
    def dma_w(g):
        for ii in range(2):
            a(f"s_add_u32 s10, s9, {(g%4)*8192 + ii*1024}")
            a("s_mov_b32 m0, s10")
            a(f"s_add_u32 s11, s8, {(g*32 + ii*4)*3456}")
            a(f"buffer_load_dwordx4 v{V_WD}, s[52:55], s11 offen lds")
            vm.issue(("w", g))
    ts.stamp()
    dma_x(0); dma_w(0); dma_w(1)
    ts.stamp()
    if touch:
        a(f"s_lshl_b32 s10, s{S_WAVE}, 6")
        a("v_add_u32 v1, s10, v0")
        a("v_lshrrev_b32 v2, 1, v1")
        a("v_lshlrev_b32 v2, 2, v2")
        a(f"v_add_u32 v2, s{s_rbl}, v2")
        a("v_mul_u32_u24 v2, 3456, v2")
        a("v_and_b32 v3, 1, v1")
        a("v_lshl_add_u32 v2, v3, 7, v2")
        a(f"buffer_load_dword v{DUMMY}, v2, s[52:55], s5 offen")
        vm.issue("touch")
        a(f"v_add_u32 v2, {512*3456}, v2")
        a(f"buffer_load_dword v{DUMMY}, v2, s[52:55], s5 offen")
        vm.issue("touch")
        a("v_mul_u32_u24 v2, 7, v1")
        a(f"v_add_u32 v2, s{s_cbl}, v2")
        a("v_lshlrev_b32 v2, 7, v2")
        a("v_mov_b32 v3, 0x40000000")
        a(f"v_cmp_gt_u32 vcc, {1280*128}, v2")
        a.nop(2)
        a("v_cndmask_b32 v2, v3, v2, vcc")
        a(f"s_mul_i32 s10, s{s_rb}, 163840")
        a(f"buffer_load_dword v{DUMMY}, v2, s[48:51], s10 offen")
        vm.issue("touch")
    a("v_lshrrev_b32 v1, 4, v0")
    a("v_bfe_u32 v2, v0, 2, 2")
    a("v_and_b32 v3, 3, v0")
    a("v_lshl_add_u32 v4, v1, 3, v2")
    a("v_lshlrev_b32 v4, 8, v4")
    a("v_lshl_add_u32 v4, v3, 3, v4")
    a("v_and_b32 v5, 1, v1")
    a("v_lshl_or_b32 v5, v5, 2, v2")
    a("v_lshl_add_u32 v4, v5, 5, v4")
    a(f"v_add_u32 v4, {W1R}, v4")
    for t in range(8):
        a(f"v_xor_b32 v{VA_W+t}, {32*t}, v4")
    a("v_and_b32 v2, 15, v0")
    a("v_and_b32 v3, 7, v0")
    a("v_xor_b32 v3, v3, v1")
    a("v_lshlrev_b32 v3, 4, v3")
    a("v_lshl_add_u32 v3, v2, 7, v3")
    a(f"v_add_u32 v{VA_X}, s7, v3")
    a(f"v_xor_b32 v{VA_X+1}, 64, v{VA_X}")
    for i in range(64):
        a(f"v_mov_b32 v{ACC+i}, 0")

    def reads(g, st):
        out = []
        j = g >> 1; hh = g & 1
        for rt in range(2):
            out.append(f"ds_read_b128 v[{XF[st]+4*rt}:{XF[st]+4*rt+3}], v{VA_X+hh} offset:{(j%3)*16384 + rt*2048}")
        for t in range(8):
            for h2 in range(2):
                out.append(f"ds_read_b64_tr_b16 v[{WF[st]+4*t+2*h2}:{WF[st]+4*t+2*h2+1}], v{VA_W+t} offset:{(g%4)*8192 + h2*1024}")
        return out
    vm.wait_for([("x", 0), ("w", 0)])
    a("s_barrier")
    ts.stamp()
    for r in reads(0, 0): a(r)
    dma_w(2); dma_x(1); dma_w(3); dma_x(2)
    ts.stamp()
    NG = 20
    for i in range(NG):
        st = i & 1
        nxt = []
        if i + 1 < NG:
            vm.wait_for([("w", i+1), ("x", (i+1) >> 1)])
        a("s_waitcnt lgkmcnt(0)")
        ts.commit()
        a("s_barrier")
        ts.stamp()
        dm = []
        if i + 1 < NG:
            nxt = reads(i+1, st ^ 1)
        pend_dma = []
        if i + 4 < NG: pend_dma.append(("w", i+4))
        if (i & 1) and ((i-1)//2 + 3) < 10: pend_dma.append(("x", (i-1)//2 + 3))
        mf = []
        for t in range(8):
            for rt in range(2):
                c = ACC + (rt*8 + t)*4
                mf.append(f"v_mfma_f32_16x16x32_bf16 v[{c}:{c+3}], v[{WF[st]+4*t}:{WF[st]+4*t+3}], v[{XF[st]+4*rt}:{XF[st]+4*rt+3}], v[{c}:{c+3}]")
        ri = 0
        for m in range(16):
            a(mf[m])
            k = 2 if m < 6 else 1
            for _ in range(k):
                if ri < len(nxt): a(nxt[ri]); ri += 1
            if m == 3 and pend_dma:
                kind, idx = pend_dma.pop(0)
                (dma_w if kind == "w" else dma_x)(idx)
            if m == 9 and pend_dma:
                kind, idx = pend_dma.pop(0)
                (dma_w if kind == "w" else dma_x)(idx)
        while ri < len(nxt): a(nxt[ri]); ri += 1
    ts.stamp()
    vm.wait_for("bias")
    for t in range(8):
        a(f"v_lshlrev_b32 v{128+4*t}, 16, v{V_BIAS+2*t}")
        a(f"v_and_b32 v{129+4*t}, 0xffff0000, v{V_BIAS+2*t}")
        a(f"v_lshlrev_b32 v{130+4*t}, 16, v{V_BIAS+2*t+1}")
        a(f"v_and_b32 v{131+4*t}, 0xffff0000, v{V_BIAS+2*t+1}")
    a("v_lshrrev_b32 v1, 4, v0")
    a("v_and_b32 v2, 1, v1")
    a("v_lshrrev_b32 v3, 1, v1")
    a("v_lshl_or_b32 v2, v2, 1, v3")
    a("v_and_b32 v3, 15, v0")
    a("v_lshl_add_u32 v2, v2, 4, v3")
    a("v_lshlrev_b32 v2, 4, v2")
    a(f"s_lshl_b32 s10, s{s_rb}, 3")
    a(f"s_lshl_b32 s11, s{S_WAVE}, 1")
    a("s_add_u32 s10, s10, s11")
    a("s_mul_i32 s10, s10, 54")
    a("s_lshr_b32 s11, s4, 1")
    a("s_add_u32 s10, s10, s11")
    a("s_lshl_b32 s10, s10, 10")
    a.nop(4)
    for rt in range(2):
        for tp in range(4):
            o = 160 + 4*((rt*4+tp) % 4)
            for h in range(2):
                t = 2*tp + h
                c = ACC + (rt*8 + t)*4
                T = 20
                a(f"v_cvt_pk_bf16_f32 v{T}, v{c}, v{c+1}")
                a(f"v_cvt_pk_bf16_f32 v{T+1}, v{c+2}, v{c+3}")
                a(f"v_lshlrev_b32 v{T+2}, 16, v{T}")
                a(f"v_and_b32 v{T+3}, 0xffff0000, v{T}")
                a(f"v_lshlrev_b32 v{T+4}, 16, v{T+1}")
                a(f"v_and_b32 v{T+5}, 0xffff0000, v{T+1}")
                a(f"v_pk_add_f32 v[{T+2}:{T+3}], v[{T+2}:{T+3}], v[{128+4*t}:{129+4*t}]")
                a(f"v_pk_add_f32 v[{T+4}:{T+5}], v[{T+4}:{T+5}], v[{130+4*t}:{131+4*t}]")
                a(f"v_cvt_pk_bf16_f32 v{T}, v{T+2}, v{T+3}")
                a(f"v_cvt_pk_bf16_f32 v{T+1}, v{T+4}, v{T+5}")
                a(f"v_pk_max_i16 v{T}, v{T}, 0")
                a(f"v_pk_max_i16 v{T+1}, v{T+1}, 0")
                a(f"v_lshlrev_b32 v{T+2}, 16, v{T}")
                a(f"v_and_b32 v{T+3}, 0xffff0000, v{T}")
                a(f"v_lshlrev_b32 v{T+4}, 16, v{T+1}")
                a(f"v_and_b32 v{T+5}, 0xffff0000, v{T+1}")
                a(f"v_pk_mul_f32 v[{T+2}:{T+3}], v[{T+2}:{T+3}], v[{T+2}:{T+3}]")
                a(f"v_pk_mul_f32 v[{T+4}:{T+5}], v[{T+4}:{T+5}], v[{T+4}:{T+5}]")
                a(f"v_cvt_pk_bf16_f32 v{o+2*h}, v{T+2}, v{T+3}")
                a(f"v_cvt_pk_bf16_f32 v{o+2*h+1}, v{T+4}, v{T+5}")
            a.nop(2)
            a(f"v_permlane16_swap_b32 v{o}, v{o+2}")
            a(f"v_permlane16_swap_b32 v{o+1}, v{o+3}")
            a(f"s_add_u32 s11, s10, {(rt*54 + tp)*1024}")
            a.nop(1)
            a(f"buffer_store_dwordx4 v[{o}:{o+3}], v2, s[60:63], s11 offen {st_flags}")
    ts.stamp()
    a("s_waitcnt vmcnt(0)")
    ts.stamp(); ts.stamp(real=True)
    ts.flush()

def touch_g1(a, s_xcd, s_tau, dummy):
    a(f"s_lshl_b32 s10, s{s_tau}, 2")
    a(f"s_add_u32 s10, s10, s{S_WAVE}")
    a("s_mul_i32 s11, s10, 7")
    a("v_add_u32 v1, s11, v0")
    a("v_mul_u32_u24 v2, 4682, v1")
    a("v_lshrrev_b32 v2, 16, v2")
    a("v_mul_u32_u24 v3, 14, v2")
    a("v_sub_u32 v3, v1, v3")
    a(f"s_and_b32 s11, s{s_xcd}, 1")
    a("s_sub_u32 s11, 13, s11")
    a("v_min_u32 v3, s11, v3")
    a("v_min_u32 v2, 63, v2")
    a("v_mul_u32_u24 v2, 3456, v2")
    a("v_lshl_add_u32 v2, v3, 7, v2")
    a(f"s_and_b32 s11, s{s_xcd}, 1")
    a("s_mul_i32 s11, s11, 1792")
    a(f"s_add_u32 s11, s11, {64*3456}")
    a("v_add_u32 v2, s11, v2")
    a("s_lshl_b32 s11, s10, 2")
    a("s_sub_u32 s11, s11, 7")
    a("v_add_u32 v3, s11, v0")
    a("v_mul_u32_u24 v3, 1280, v3")
    a(f"s_lshr_b32 s11, s{s_xcd}, 1")
    a(f"s_mul_i32 s11, s11, {512*1280}")
    a(f"s_add_u32 s11, s11, {1*128}")
    a("v_add_u32 v3, s11, v3")
    a("v_cmp_gt_u32 vcc, 7, v0")
    a(f"v_mov_b32 v4, {64*3456}")
    a("v_mov_b32 v5, 128")
    a("v_cndmask_b32 v2, v3, v2, vcc")
    a("v_cndmask_b32 v4, v5, v4, vcc")
    a(f"v_mov_b32 v6, s{P_U}")
    a(f"v_mov_b32 v7, s{P_U+1}")
    a(f"v_mov_b32 v8, s{P_W1}")
    a(f"v_mov_b32 v9, s{P_W1+1}")
    a("v_cndmask_b32 v6, v6, v8, vcc")
    a("v_cndmask_b32 v7, v7, v9, vcc")
    a("v_add_co_u32 v6, vcc, v6, v2")
    a("v_addc_co_u32 v7, vcc, 0, v7, vcc")
    a("s_mov_b64 s[10:11], exec")
    a("s_mov_b64 exec, 0x7ff")
    for r in range(9):
        a(f"global_load_dword v{dummy}, v[6:7], off")
        if r < 8:
            a("v_add_co_u32 v6, vcc, v6, v4")
            a("v_addc_co_u32 v7, vcc, 0, v7, vcc")
    a("s_mov_b64 exec, s[10:11]")

def k_g1(a):
    import os
    prologue(a, "g1_kernel", 208)
    a("s_cmp_ge_u32 s2, 512")
    a("s_cbranch_scc1 g1_end")
    a("s_and_b32 s12, s2, 7")
    a("s_lshr_b32 s13, s2, 3")
    a("s_cmp_ge_u32 s13, 32")
    a("s_cbranch_scc1 g1_touch")
    a("s_cmp_ge_u32 s13, 28")
    a("s_cbranch_scc1 g1_end")
    a("s_and_b32 s14, s13, 3")
    a("s_lshr_b32 s15, s13, 2")
    a("s_lshr_b32 s98, s12, 1")
    a("s_lshl_b32 s98, s98, 2")
    a("s_add_u32 s98, s98, s14")
    a("s_and_b32 s99, s12, 1")
    a("s_mul_i32 s99, s99, 7")
    a("s_add_u32 s99, s99, s15")
    role_G1(a, 98, 99, touch=False)
    a("s_endpgm")
    a.label("g1_touch")
    if os.environ.get("NOTOUCH") != "1":
        a("s_sub_u32 s13, s13, 32")
        touch_g1(a, 12, 13, 209)
    a.label("g1_end")
    a("s_endpgm")

if __name__ == "__main__":
    build([("aux_kernel", k_aux, 396, 24576, 128), ("g1_kernel", k_g1, 512, 81920, 216)], "k2.s")
```

```python
from gen import *

ACC2 = 128
AF = [8, 44, 80]
NST = 3
RED = 0
LAT = 61440

def role_G2(a, s_m, s_c, ld_flags="", wait_main=None, wait_epi=None):
    ts = TS(a, 210); ts.stamp(real=True); ts.stamp()
    srd(a, 48, P_WS, SZ_H, add=WS_H)
    srd(a, 52, P_WS, SZ_W2F, add=WS_W2F)
    srd(a, 56, P_WS, SZ_AT, add=WS_AT)
    srd(a, 60, P_OUT, SZ_X)
    srd(a, 64, P_WS, L*4, add=WS_G)
    srd(a, 68, P_B2, D*2)
    vm = VM(a)
    a("v_lshlrev_b32 v1, 4, v0")
    a(f"s_mul_i32 s4, s{s_c}, 54")
    a(f"s_add_u32 s4, s4, s{S_WAVE}")
    a("s_mul_i32 s4, s4, 5120")
    a(f"s_mul_i32 s5, s{s_m}, {4*54}")
    a(f"s_add_u32 s5, s5, s{S_WAVE}")
    a("s_lshl_b32 s5, s5, 10")
    a("v_add_u32 v2, 4096, v1")
    def loadA(it):
        st = it % NST
        a(f"s_add_u32 s6, s4, {it*4*5120}")
        for t in range(5):
            if t < 4: a(f"buffer_load_dwordx4 v[{AF[st]+4*t}:{AF[st]+4*t+3}], v1, s[52:55], s6 offen offset:{1024*t}")
            else:     a(f"buffer_load_dwordx4 v[{AF[st]+4*t}:{AF[st]+4*t+3}], v2, s[52:55], s6 offen")
            vm.issue(("A", it))
    def loadB(it):
        st = it % NST
        for rt in range(4):
            a(f"s_add_u32 s6, s5, {it*4096 + rt*54*1024}")
            a(f"buffer_load_dwordx4 v[{AF[st]+20+4*rt}:{AF[st]+20+4*rt+3}], v1, s[48:51], s6 offen {ld_flags}")
            vm.issue(("B", it))
    a("v_lshrrev_b32 v3, 4, v0")
    a("v_lshlrev_b32 v3, 3, v3")
    a(f"s_mul_i32 s7, s{s_c}, 160")
    for t in range(5):
        a(f"buffer_load_dwordx2 v[{212+2*t}:{213+2*t}], v3, s[68:71], s7 offen offset:{32*t}")
        vm.issue("b2")
    for i in range(80): a(f"v_mov_b32 v{ACC2+i}, 0")
    NIT = 14
    loadA(0); loadA(1)
    if wait_main: wait_main(a, vm)
    loadB(0); loadB(1)
    lab_skip = a.newlabel("g2_skip")
    for it in range(NIT):
        st = it % NST
        if it == NIT-1:
            a(f"s_cmp_ge_u32 s{S_WAVE}, 2")
            a(f"s_cbranch_scc1 {lab_skip}")
        if it + 2 < NIT:
            if it + 2 == NIT-1:
                pass
            loadA(it+2); loadB(it+2)
        vm.wait_for([("A", it), ("B", it)])
        for rt in range(4):
            for t in range(5):
                c = ACC2 + (rt*5+t)*4
                a(f"v_mfma_f32_16x16x32_bf16 v[{c}:{c+3}], v[{AF[st]+4*t}:{AF[st]+4*t+3}], v[{AF[st]+20+4*rt}:{AF[st]+20+4*rt+3}], v[{c}:{c+3}]")
    a.label(lab_skip)
    a("s_waitcnt vmcnt(0)")
    vm.q = []
    ts.stamp()
    if wait_epi: wait_epi(a, vm)
    a("v_lshrrev_b32 v3, 3, v0")
    a("v_lshlrev_b32 v3, 12, v3")
    a("v_and_b32 v4, 7, v0")
    a("v_lshl_add_u32 v3, v4, 4, v3")
    a(f"s_mul_i32 s6, s{s_c}, {80*4096}")
    a(f"s_lshl_b32 s7, s{s_m}, 7")
    a("s_add_u32 s6, s6, s7")
    a(f"s_lshl_b32 s7, s{S_WAVE}, 15")
    a("s_add_u32 s6, s6, s7")
    a(f"s_lshl_b32 s7, s{S_WAVE}, 10")
    a(f"s_add_u32 s7, s7, {LAT}")
    labz = a.newlabel("g2_at")
    for z in range(3):
        if z == 2:
            a(f"s_cmp_ge_u32 s{S_WAVE}, 2")
            a(f"s_cbranch_scc1 {labz}")
        a("s_mov_b32 m0, s7")
        a("s_add_u32 s7, s7, 4096")
        a(f"buffer_load_dwordx4 v3, s[56:59], s6 offen {ld_flags} lds")
        a(f"s_add_u32 s6, s6, {32*4096}")
    a.label(labz)
    a("v_and_b32 v4, 15, v0")
    a("v_lshlrev_b32 v4, 2, v4")
    a(f"s_lshl_b32 s6, s{s_m}, 8")
    a(f"s_lshl_b32 s7, s{S_WAVE}, 6")
    a("s_add_u32 s6, s6, s7")
    a(f"buffer_load_dword v211, v4, s[64:67], s6 offen {ld_flags}")
    a.nop(8)
    for rt in range(4):
        lab = a.newlabel("g2_nw")
        a(f"s_cmp_eq_u32 s{S_WAVE}, {rt}")
        a(f"s_cbranch_scc1 {lab}")
        a(f"s_sub_u32 s6, s{S_WAVE}, {rt+1}")
        a("s_and_b32 s6, s6, 3")
        a("s_mul_i32 s6, s6, 5120")
        a(f"s_add_u32 s6, s6, {RED + rt*15360}")
        a("v_add_u32 v5, s6, v1")
        for t in range(5):
            c = ACC2 + (rt*5+t)*4
            a(f"ds_write_b128 v5, v[{c}:{c+3}] offset:{1024*t}")
        a.label(lab)
    for rt in range(4):
        lab = a.newlabel("g2_mv")
        a(f"s_cmp_lg_u32 s{S_WAVE}, {rt}")
        a(f"s_cbranch_scc1 {lab}")
        for i in range(20):
            a(f"v_mov_b32 v{8+i}, v{ACC2+rt*20+i}")
        a.label(lab)
    a("s_waitcnt vmcnt(0) lgkmcnt(0)")
    a("s_barrier")
    a(f"s_mul_i32 s6, s{S_WAVE}, 15360")
    if RED: a(f"s_add_u32 s6, s6, {RED}")
    a("v_add_u32 v5, s6, v1")
    for i in range(3):
        for t in range(5):
            a(f"ds_read_b128 v[{32+(i*5+t)*4}:{35+(i*5+t)*4}], v5 offset:{i*5120+1024*t}")
    a("v_lshrrev_b32 v3, 4, v0")
    a("v_bfe_u32 v4, v0, 2, 2")
    a("v_lshl_add_u32 v4, v3, 2, v4")
    a("v_lshlrev_b32 v4, 7, v4")
    a("v_and_b32 v6, 3, v0")
    a("v_lshl_add_u32 v4, v6, 3, v4")
    a(f"s_lshl_b32 s6, s{S_WAVE}, 5")
    a(f"s_add_u32 s6, s6, {LAT}")
    a("v_add_u32 v4, s6, v4")
    for t in range(5):
        a(f"ds_read_b64_tr_b16 v[{96+2*t}:{97+2*t}], v4 offset:{2048*t}")
    a("s_waitcnt lgkmcnt(0)")
    for i in range(3):
        for k in range(20):
            a(f"v_add_f32 v{8+k}, v{8+k}, v{32+i*20+k}")
    a("v_sub_f32 v30, 1.0, v211")
    a("v_cvt_pk_bf16_f32 v30, v30, v30")
    a("v_lshlrev_b32 v30, 16, v30")
    a("v_and_b32 v4, 15, v0")
    a("v_mul_u32_u24 v4, 1280, v4")
    a("v_and_b32 v5, 1, v3")
    a("v_lshlrev_b32 v6, 3, v3")
    a("v_mul_u32_u24 v7, 24, v5")
    a("v_add3_u32 v31, v4, v6, v7")
    a("v_add_u32 v29, v4, v6")
    a(f"s_lshl_b32 s6, s{s_m}, 6")
    a(f"s_lshl_b32 s7, s{S_WAVE}, 4")
    a("s_add_u32 s6, s6, s7")
    a("s_mul_i32 s6, s6, 1280")
    a(f"s_mul_i32 s7, s{s_c}, 160")
    a("s_add_u32 s6, s6, s7")
    P = 108
    for t in range(5):
        c = 8 + 4*t
        T = 32
        a(f"v_cvt_pk_bf16_f32 v{T}, v{c}, v{c+1}")
        a(f"v_cvt_pk_bf16_f32 v{T+1}, v{c+2}, v{c+3}")
        a(f"v_lshlrev_b32 v{T+2}, 16, v{T}")
        a(f"v_and_b32 v{T+3}, 0xffff0000, v{T}")
        a(f"v_lshlrev_b32 v{T+4}, 16, v{T+1}")
        a(f"v_and_b32 v{T+5}, 0xffff0000, v{T+1}")
        a(f"v_lshlrev_b32 v{T+6}, 16, v{212+2*t}")
        a(f"v_and_b32 v{T+7}, 0xffff0000, v{212+2*t}")
        a(f"v_lshlrev_b32 v{T+8}, 16, v{213+2*t}")
        a(f"v_and_b32 v{T+9}, 0xffff0000, v{213+2*t}")
        for i in range(4): a(f"v_add_f32 v{T+2+i}, v{T+2+i}, v{T+6+i}")
        a(f"v_cvt_pk_bf16_f32 v{T}, v{T+2}, v{T+3}")
        a(f"v_cvt_pk_bf16_f32 v{T+1}, v{T+4}, v{T+5}")
        a(f"v_lshlrev_b32 v{T+2}, 16, v{T}")
        a(f"v_and_b32 v{T+3}, 0xffff0000, v{T}")
        a(f"v_lshlrev_b32 v{T+4}, 16, v{T+1}")
        a(f"v_and_b32 v{T+5}, 0xffff0000, v{T+1}")
        for i in range(4): a(f"v_mul_f32 v{T+2+i}, v30, v{T+2+i}")
        a(f"v_cvt_pk_bf16_f32 v{T}, v{T+2}, v{T+3}")
        a(f"v_cvt_pk_bf16_f32 v{T+1}, v{T+4}, v{T+5}")
        a(f"v_lshlrev_b32 v{T+6}, 16, v{96+2*t}")
        a(f"v_and_b32 v{T+7}, 0xffff0000, v{96+2*t}")
        a(f"v_lshlrev_b32 v{T+8}, 16, v{97+2*t}")
        a(f"v_and_b32 v{T+9}, 0xffff0000, v{97+2*t}")
        for i in range(4): a(f"v_mul_f32 v{T+6+i}, v211, v{T+6+i}")
        a(f"v_cvt_pk_bf16_f32 v{T+10}, v{T+6}, v{T+7}")
        a(f"v_cvt_pk_bf16_f32 v{T+11}, v{T+8}, v{T+9}")
        a(f"v_lshlrev_b32 v{T+2}, 16, v{T}")
        a(f"v_and_b32 v{T+3}, 0xffff0000, v{T}")
        a(f"v_lshlrev_b32 v{T+4}, 16, v{T+1}")
        a(f"v_and_b32 v{T+5}, 0xffff0000, v{T+1}")
        a(f"v_lshlrev_b32 v{T+6}, 16, v{T+10}")
        a(f"v_and_b32 v{T+7}, 0xffff0000, v{T+10}")
        a(f"v_lshlrev_b32 v{T+8}, 16, v{T+11}")
        a(f"v_and_b32 v{T+9}, 0xffff0000, v{T+11}")
        for i in range(4): a(f"v_add_f32 v{T+2+i}, v{T+6+i}, v{T+2+i}")
        a(f"v_cvt_pk_bf16_f32 v{P+2*t}, v{T+2}, v{T+3}")
        a(f"v_cvt_pk_bf16_f32 v{P+2*t+1}, v{T+4}, v{T+5}")
    a.nop(2)
    for tp in range(2):
        o = P + 4*tp
        a(f"v_permlane16_swap_b32 v{o}, v{o+2}")
        a(f"v_permlane16_swap_b32 v{o+1}, v{o+3}")
    a.nop(1)
    for tp in range(2):
        o = P + 4*tp
        a(f"buffer_store_dwordx4 v[{o}:{o+3}], v31, s[60:63], s6 offen offset:{64*tp}")
    a(f"buffer_store_dwordx2 v[{P+8}:{P+9}], v29, s[60:63], s6 offen offset:128")
    ts.stamp()
    if ts.on:
        a("s_waitcnt vmcnt(0)")
        ts.stamp(); ts.stamp(real=True); ts.flush(base=0x40000)

def k_g2(a):
    prologue(a, "g2_kernel", 222)
    a("s_cmp_ge_u32 s2, 256")
    a("s_cbranch_scc1 g2_end")
    a("s_and_b32 s12, s2, 7")
    a("s_lshr_b32 s13, s2, 3")
    a("s_lshl_b32 s12, s12, 2")
    a("s_and_b32 s14, s13, 3")
    a("s_add_u32 s98, s12, s14")
    a("s_lshr_b32 s99, s13, 2")
    role_G2(a, 98, 99)
    a.label("g2_end")
    a("s_endpgm")
```

```python
from gen import *
import math

KP   = 0
XX   = 5120
SC   = 9216
TA_  = 9344
TB_  = TA_ + 28*528
UC   = 41024
YB1  = TA_
YB1B = TA_ + 8448
YB0A = TA_ + 8448 + 2304
PS = 2560

ROWS = {0:0,1:1,2:2,3:3,4:256,5:258,6:260,7:262,8:4,9:5,10:6,11:7,12:264,13:512,14:516,15:520,16:1024,17:1032,18:1280,19:1288,20:768,21:772,22:776,24:1536,25:1544,26:1792,27:1800}
ROW_OF = {p: r for r, p in ROWS.items()}

def f32(x):
    import struct
    return "0x%08x" % struct.unpack("<I", struct.pack("<f", x))[0]
LOG2E = math.log2(math.e)
import numpy as np
L2E_HI = float(np.float32(LOG2E)); L2E_LO = LOG2E - L2E_HI

def exp_acc(a, dst, src, t0, t1):
    a(f"v_mul_f32 v{t0}, s70, v{src}")
    a(f"v_fma_f32 v{t1}, v{src}, s70, -v{t0}")
    a(f"v_fma_f32 v{t1}, v{src}, s71, v{t1}")
    a(f"v_exp_f32 v{dst}, v{t0}")
    a(f"v_mul_f32 v{t1}, s72, v{t1}")
    a.nop(1)
    a(f"v_fma_f32 v{dst}, v{dst}, v{t1}, v{dst}")

def bf16r(a, dst, src):
    a(f"v_cvt_pk_bf16_f32 v{dst}, v{src}, v{src}")
    a(f"v_lshlrev_b32 v{dst}, 16, v{dst}")

def cexp(a, dst, p, RHO, TH, t):
    a(f"v_mul_f32 v{t}, {f32(float(p)) if p > 64 else float(p)}, v{RHO}")
    a(f"v_mul_f32 v{t+1}, {f32(float(p)) if p > 64 else float(p)}, v{TH}")
    a(f"v_exp_f32 v{t}, v{t}")
    a(f"v_fract_f32 v{t+1}, v{t+1}")
    a(f"v_cos_f32 v{t+2}, v{t+1}")
    a(f"v_sin_f32 v{t+1}, v{t+1}")
    a.nop(1)
    a(f"v_mul_f32 v{dst}, v{t}, v{t+2}")
    a(f"v_mul_f32 v{dst+1}, v{t}, v{t+1}")

def cmul(a, d, x, y):
    a(f"v_pk_mul_f32 v[{d}:{d+1}], v[{x}:{x+1}], v[{y}:{y+1}] op_sel:[0,0] op_sel_hi:[0,1]")
    a(f"v_pk_fma_f32 v[{d}:{d+1}], v[{x}:{x+1}], v[{y}:{y+1}], v[{d}:{d+1}] op_sel:[1,1,0] op_sel_hi:[1,0,1] neg_lo:[1,0,0]")

def role_SSM(a, s_ch0, s_nch, st_flags="", ld_flags="", wait_ut=None):
    ts = TS(a, 120); ts.stamp(real=True); ts.stamp()
    srd(a, 48, P_LAR, D*N*2); srd(a, 52, P_AIM, D*N*2); srd(a, 56, P_CR, D*N*2); srd(a, 60, P_CI, D*N*2)
    srd(a, 64, P_WS, SZ_UT, add=WS_UT)
    srd(a, 80, P_LDT, D*2); srd(a, 84, P_DSK, D*2)
    srd(a, 88, P_WS, SZ_AT, add=WS_AT)
    a(f"s_mov_b32 s70, {f32(L2E_HI)}")
    a(f"s_mov_b32 s71, {f32(L2E_LO)}")
    a(f"s_mov_b32 s72, {f32(math.log(2.0))}")
    a(f"s_mov_b32 s73, {f32(1.0/(2*math.pi))}")
    a(f"s_and_b32 s4, s{S_WAVE}, 1")
    a("s_lshl_b32 s5, s4, 6")
    a("v_add_u32 v1, s5, v0")
    a("v_lshlrev_b32 v3, 2, v1")
    a("v_lshlrev_b32 v1, 1, v1")
    a("v_mov_b32 v2, 0")
    a(f"s_cmp_ge_u32 s{S_WAVE}, 2")
    a(f"s_mov_b32 s6, {TB_}")
    a(f"s_cselect_b32 s5, {TA_}, s6")
    a("v_add_u32 v3, s5, v3")
    a("v_and_b32 v22, 31, v0")
    a("v_lshrrev_b32 v23, 5, v0")
    a("v_mul_u32_u24 v4, 528, v22")
    a("v_lshl_add_u32 v4, v23, 4, v4")
    a("s_lshl_b32 s5, s4, 8")
    a("v_add_u32 v4, s5, v4")
    a(f"v_add_u32 v5, {TB_}, v4")
    a(f"v_add_u32 v4, {TA_}, v4")
    a("v_and_b32 v24, 7, v0")
    a("v_mul_u32_u24 v6, 4160, v24")
    a("v_bfe_u32 v24, v0, 3, 2")
    a("v_sub_u32 v24, v23, v24")
    a("v_lshlrev_b32 v24, 4, v24")
    a("v_add_u32 v6, v6, v24")
    a(f"v_add_u32 v6, {UC+48}, v6")
    a(f"v_mul_u32_u24 v7, {PS}, v23")
    a("v_lshl_add_u32 v7, v22, 4, v7")
    a(f"v_add_u32 v7, {KP}, v7")
    for z in range(9):
        a(f"s_lshl_b32 s5, s{S_WAVE}, 10")
        a(f"s_add_u32 s5, s5, {4096*z}")
        a("v_lshlrev_b32 v24, 4, v0")
        a("v_add_u32 v24, s5, v24")
        a("v_lshrrev_b32 v25, 6, v24")
        a("v_mul_u32_u24 v25, 1009, v25")
        a("v_lshrrev_b32 v25, 16, v25")
        a("v_mul_u32_u24 v25, 4162, v25")
        a("v_sub_u32 v24, v24, v25")
        a(f"v_add_u32 v{8+z}, 14, v24")
        if z == 8:
            a("v_mov_b32 v25, 0x40000000")
            a(f"s_lshl_b32 s5, s{S_WAVE}, 6")
            a("v_add_u32 v24, s5, v0")
            a("v_cmp_gt_u32 vcc, 32, v24")
            a.nop(2)
            a(f"v_cndmask_b32 v{8+z}, v25, v{8+z}, vcc")
    a("v_and_b32 v24, 1, v0")
    a(f"v_mul_u32_u24 v17, {PS}, v24")
    a("v_lshrrev_b32 v24, 1, v22")
    a("v_lshl_add_u32 v17, v24, 4, v17")
    a(f"v_add_u32 v17, {KP+512}, v17")
    a("v_lshlrev_b32 v18, 6, v22")
    a("v_lshl_add_u32 v18, v23, 4, v18")
    a("v_lshlrev_b32 v24, 5, v22")
    a("v_lshl_add_u32 v24, v23, 3, v24")
    a(f"v_sub_u32 v19, {UC+7*4160+4088-3*1024-16}, v24")
    a("v_lshlrev_b32 v20, 5, v22")
    a("v_lshl_add_u32 v20, v23, 4, v20")
    a("v_lshlrev_b32 v21, 4, v0")
    a("v_lshrrev_b32 v24, 5, v0")
    a(f"v_mul_u32_u24 v24, {PS}, v24")
    a("v_lshl_add_u32 v24, v22, 4, v24")
    a(f"v_add_u32 v24, {KP}, v24")
    for i in range(4): a(f"v_mov_b32 v{28+i}, 0")
    a("ds_write_b128 v24, v[28:31]")
    a("s_mov_b32 s92, 1"); a("s_mov_b32 s93, 1")
    a("s_mov_b32 s94, 0"); a("s_mov_b32 s95, -1")
    a("s_mov_b32 s96, 0xaaaaaaaa"); a("s_mov_b32 s97, 0xaaaaaaaa")
    a(f"s_mov_b32 s74, s{s_ch0}")
    a(f"s_add_u32 s75, s{s_ch0}, s{s_nch}")

    def load_params():
        a("s_lshl_b32 s5, s74, 8")
        a("buffer_load_ushort v32, v1, s[48:51], s5 offen")
        a("buffer_load_ushort v33, v1, s[52:55], s5 offen")
        a("buffer_load_ushort v34, v1, s[56:59], s5 offen")
        a("buffer_load_ushort v35, v1, s[60:63], s5 offen")
        a("s_lshl_b32 s5, s74, 1")
        a("buffer_load_ushort v36, v2, s[80:83], s5 offen")
        a("buffer_load_ushort v37, v2, s[84:87], s5 offen")
    load_params()
    first = True
    a.label("ssm_loop")
    if wait_ut: wait_ut(a)
    a(f"s_mul_i32 s5, s74, {UT_RS}")
    a(f"s_lshl_b32 s6, s{S_WAVE}, 10")
    if UC: a(f"s_add_u32 s6, s6, {UC}")
    for z in range(9):
        if z == 8:
            lab8 = a.newlabel("ssm_z8")
            a(f"s_cmp_lg_u32 s{S_WAVE}, 0")
            a(f"s_cbranch_scc1 {lab8}")
        a("s_mov_b32 m0, s6")
        a("s_add_u32 s6, s6, 4096")
        a(f"buffer_load_dwordx4 v{8+z}, s[64:67], s5 offen {ld_flags} lds")
        if z == 8: a.label(lab8)
    a("s_waitcnt vmcnt(8)")
    for r in (32,33,34,35,36,37): a(f"v_lshlrev_b32 v{r}, 16, v{r}")
    exp_acc(a, 38, 36, 40, 41); bf16r(a, 38, 38)
    exp_acc(a, 39, 32, 40, 41); bf16r(a, 39, 39)
    a("v_mul_f32 v39, v39, v38")
    a("v_mul_f32 v42, s70, v39")
    a("v_sub_f32 v42, 0, v42")
    a("v_mul_f32 v43, v33, v38")
    a("v_mul_f32 v43, s73, v43")
    a("v_mov_b32 v44, v37")
    RHO, TH = 42, 43
    labA = a.newlabel("ssm_A"); labT = a.newlabel("ssm_Tdone")
    a(f"s_cmp_ge_u32 s{S_WAVE}, 2")
    a(f"s_cbranch_scc1 {labA}")
    def wr(row, reg, neg=False):
        a(f"v_cvt_pk_f16_f32 v{60 + (row%4)}, v{reg}, {'-' if neg else ''}v{reg+1}")
        a(f"ds_write_b32 v3, v{60 + (row%4)} offset:{row*528}")
    Q = [46, 48, 50, 52]
    a(f"v_mov_b32 v{Q[0]}, 1.0"); a(f"v_mov_b32 v{Q[0]+1}, 0")
    cexp(a, Q[1], 8, RHO, TH, 64)
    cexp(a, 54, 32, RHO, TH, 67)
    cmul(a, Q[2], Q[1], Q[1]); cmul(a, Q[3], Q[2], Q[1])
    cur = list(Q); alt = [70, 72, 74, 76]
    for u in range(8):
        for v in range(4): wr(4*u+v, cur[v])
        if u < 7:
            for v in range(4): cmul(a, alt[v], cur[v], 54)
            cur, alt = alt, cur
    a(f"s_branch {labT}")
    a.label(labA)
    a("v_mul_f32 v46, v34, v38"); a("v_mul_f32 v47, v35, v38")
    a("v_add_f32 v46, v46, v46"); a("v_add_f32 v47, v47, v47")
    a("v_max_f32 v48, |v46|, |v47|")
    for sh in (8, 4, 2, 1):
        a.nop(2)
        a(f"v_max_f32_dpp v48, v48, v48 row_ror:{sh} row_mask:0xf bank_mask:0xf")
    a.nop(1)
    for i in range(4): a(f"v_readlane_b32 s{8+i}, v48, {16*i}")
    a.nop(2)
    a("s_max_u32 s8, s8, s9"); a("s_max_u32 s10, s10, s11"); a("s_max_u32 s8, s8, s10")
    a("s_lshr_b32 s8, s8, 23")
    a("s_min_u32 s8, s8, 252")
    a("s_sub_u32 s9, 253, s8"); a("s_lshl_b32 s9, s9, 23")
    a("s_add_u32 s10, s8, 1"); a("s_lshl_b32 s10, s10, 23")
    a("v_mul_f32 v46, s9, v46"); a("v_mul_f32 v47, s9, v47")
    a("v_mov_b32 v49, s10")
    a(f"s_and_b32 s11, s{S_WAVE}, 1"); a("s_lshl_b32 s11, s11, 2"); a(f"s_add_u32 s11, s11, {SC}")
    a("v_mov_b32 v50, s11")
    a("ds_write_b32 v50, v49")
    E1, E2, E4, E8, E256 = 64, 66, 68, 70, 72
    cexp(a, E1, 1, RHO, TH, 50); cexp(a, E8, 8, RHO, TH, 53); cexp(a, E256, 256, RHO, TH, 56)
    cmul(a, E2, E1, E1); cmul(a, E4, E2, E2)
    X = {0: 46}
    pool = [74, 76, 78, 80, 82, 84, 86, 88, 90, 92, 94, 96, 98, 100]
    pi = [0]
    def mk(p, src, mul, keep=True):
        r = pool[pi[0] % len(pool)]; pi[0] += 1
        cmul(a, r, X[src], mul); X[p] = r
        wr(ROW_OF[p], r, neg=True)
    wr(0, 46, neg=True)
    mk(1, 0, E1); mk(2, 0, E2); mk(4, 0, E4); mk(256, 0, E256)
    mk(3, 2, E1); mk(5, 4, E1); mk(6, 4, E2); mk(512, 256, E256)
    mk(7, 6, E1); mk(258, 256, E2); mk(260, 256, E4); mk(264, 256, E8)
    mk(262, 260, E2); mk(768, 512, E256)
    mk(516, 512, E4); mk(520, 512, E8); mk(1024, 768, E256)
    mk(772, 768, E4)
    mk(776, 768, E8)
    mk(1032, 1024, E8); mk(1280, 1024, E256)
    mk(1288, 1280, E8)
    mk(1536, 1280, E256); mk(1544, 1536, E8); mk(1792, 1536, E256); mk(1800, 1792, E8)
    a.label(labT)
    a("s_waitcnt lgkmcnt(0)")
    a("s_barrier")
    ts.stamp()
    labK = a.newlabel("ssm_K");
    a(f"s_cmp_ge_u32 s{S_WAVE}, 2")
    a(f"s_cbranch_scc1 {labK}")
    KD = 64
    for i in range(16): a(f"v_mov_b32 v{KD+i}, 0")
    a(f"s_lshl_b32 s11, s{S_WAVE}, 2"); a(f"s_add_u32 s11, s11, {SC}")
    a("v_mov_b32 v50, s11")
    a("ds_read_b32 v49, v50")
    for s in range(8):
        a(f"ds_read_b128 v[{80+8*(s%4)}:{83+8*(s%4)}], v4 offset:{32*s}")
        a(f"ds_read_b128 v[{84+8*(s%4)}:{87+8*(s%4)}], v5 offset:{32*s}")
        if s >= 3 or s == 7:
            pass
        if s >= 3:
            ss = s - 3
            a("s_waitcnt lgkmcnt(6)")
            a(f"v_mfma_f32_32x32x16_f16 v[{KD}:{KD+15}], v[{80+8*(ss%4)}:{83+8*(ss%4)}], v[{84+8*(ss%4)}:{87+8*(ss%4)}], v[{KD}:{KD+15}]")
    for ss in (5, 6, 7):
        a(f"s_waitcnt lgkmcnt({2*(7-ss)})")
        a(f"v_mfma_f32_32x32x16_f16 v[{KD}:{KD+15}], v[{80+8*(ss%4)}:{83+8*(ss%4)}], v[{84+8*(ss%4)}:{87+8*(ss%4)}], v[{KD}:{KD+15}]")
    a.nop(12)
    for i in range(16): a(f"v_mul_f32 v{KD+i}, v49, v{KD+i}")
    labx = a.newlabel("ssm_x1"); labx2 = a.newlabel("ssm_x2")
    a(f"s_cmp_eq_u32 s{S_WAVE}, 1")
    a(f"s_cbranch_scc1 {labx}")
    a(f"ds_write_b128 v21, v[{KD+8}:{KD+11}] offset:{XX}")
    a(f"ds_write_b128 v21, v[{KD+12}:{KD+15}] offset:{XX+1024}")
    a(f"s_branch {labx2}")
    a.label(labx)
    a(f"ds_write_b128 v21, v[{KD}:{KD+3}] offset:{XX+2048}")
    a(f"ds_write_b128 v21, v[{KD+4}:{KD+7}] offset:{XX+3072}")
    a.label(labx2)
    a.label(labK)
    a("s_waitcnt lgkmcnt(0)")
    a("s_barrier")
    labK2 = a.newlabel("ssm_K2"); labw1 = a.newlabel("ssm_w1")
    a(f"s_cmp_ge_u32 s{S_WAVE}, 2")
    a(f"s_cbranch_scc1 {labK2}")
    a(f"s_cmp_eq_u32 s{S_WAVE}, 1")
    a(f"s_cbranch_scc1 {labw1}")
    a(f"ds_read_b128 v[80:83], v21 offset:{XX+2048}")
    a(f"ds_read_b128 v[84:87], v21 offset:{XX+3072}")
    a("s_waitcnt lgkmcnt(0)")
    for i in range(8): a(f"v_add_f32 v{KD+i}, v{KD+i}, v{80+i}")
    r = [KD+i for i in range(8)]
    M = "s[94:95]"
    a(f"v_cndmask_b32 v80, v{r[1]}, v{r[0]}, {M}")
    a(f"v_cndmask_b32 v81, v{r[2]}, v{r[1]}, {M}")
    a(f"v_cndmask_b32 v82, v{r[3]}, v{r[2]}, {M}")
    a(f"v_cndmask_b32 v83, v{r[4]}, v{r[2]}, {M}")
    a(f"v_cndmask_b32 v84, v{r[5]}, v{r[2]}, {M}")
    a(f"v_cndmask_b32 v85, v{r[6]}, v{r[3]}, {M}")
    a(f"v_cndmask_b32 v86, v{r[7]}, v{r[4]}, {M}")
    a(f"v_cvt_pk_bf16_f32 v88, v{r[0]}, v80")
    a("v_cvt_pk_bf16_f32 v89, v81, v82")
    a("v_cvt_pk_bf16_f32 v90, v83, v84")
    a("v_cvt_pk_bf16_f32 v91, v85, v86")
    a("v_lshrrev_b32 v92, 5, v0")
    a("v_lshl_add_u32 v92, v92, 8, v17")
    a("ds_write_b128 v92, v[88:91]")
    a(f"v_cvt_pk_bf16_f32 v96, v{r[5]}, v{r[5]}")
    a(f"v_cvt_pk_bf16_f32 v97, v{r[5]}, v{r[6]}")
    a(f"v_cvt_pk_bf16_f32 v98, v{r[6]}, v{r[6]}")
    a(f"v_cvt_pk_bf16_f32 v99, v{r[7]}, v{r[7]}")
    a("s_mov_b64 exec, s[94:95]")
    a("ds_write_b128 v17, v[96:99] offset:512")
    a("s_mov_b64 exec, -1")
    a(f"s_branch {labK2}")
    a.label(labw1)
    a(f"ds_read_b128 v[80:83], v21 offset:{XX}")
    a(f"ds_read_b128 v[84:87], v21 offset:{XX+1024}")
    a("s_waitcnt lgkmcnt(0)")
    for i in range(8): a(f"v_add_f32 v{KD+8+i}, v{KD+8+i}, v{80+i}")
    r = [KD+8+i for i in range(8)]
    for h in range(4):
        z0, z1 = r[2*h], r[2*h+1]
        o = 80 + 4*h
        a(f"v_cndmask_b32 v96, v{z0}, v{z1}, s[96:97]")
        a(f"v_cvt_pk_bf16_f32 v{o}, v{z0}, v{z0}")
        a(f"v_cvt_pk_bf16_f32 v{o+2}, v96, v{z1}")
        a(f"v_cvt_pk_bf16_f32 v{o+3}, v{z1}, v{z1}")
        a(f"v_mov_b32 v{o+1}, v{o}")
    a(f"v_cvt_pk_bf16_f32 v96, v{r[0]}, v{r[0]}")
    a(f"v_cvt_pk_bf16_f32 v97, v{r[0]}, v{r[1]}")
    a(f"v_cvt_pk_bf16_f32 v98, v{r[1]}, v{r[1]}")
    a(f"v_cvt_pk_bf16_f32 v99, v{r[2]}, v{r[2]}")
    a("s_mov_b64 exec, s[94:95]")
    a("ds_write_b128 v17, v[96:99] offset:768")
    a("s_not_b64 exec, exec")
    for h in range(4):
        a(f"ds_write_b128 v17, v[{80+4*h}:{83+4*h}] offset:{1024+256*h}")
    a("s_mov_b64 exec, -1")
    a.label(labK2)
    a("s_waitcnt vmcnt(0) lgkmcnt(0)")
    a("s_barrier")
    ts.stamp()
    a("s_add_u32 s74, s74, 1")
    a("s_cmp_lt_u32 s74, s75")
    labnp = a.newlabel("ssm_np")
    a(f"s_cbranch_scc0 {labnp}")
    load_params()
    a.label(labnp)
    units = {0: [(3,0,0),(3,1,0),(0,0,1)], 1: [(3,2,0),(3,3,0)], 2: [(2,0,0),(2,1,0),(2,2,0)], 3: [(1,0,0),(1,1,0)]}
    ACCS = [64, 80]
    labs = [a.newlabel(f"ssm_cv{w}") for w in range(4)]
    labE = a.newlabel("ssm_cvdone")
    for w in range(1, 4):
        a(f"s_cmp_eq_u32 s{S_WAVE}, {w}")
        a(f"s_cbranch_scc1 {labs[w]}")
    for w in range(4):
        a.label(labs[w])
        un = units[w]
        for i in range(32 if w == 0 else 16): a(f"v_mov_b32 v{64+i}, 0")
        rs = sorted(set(r for (_, r, _) in un)); ss = sorted(set(q - r for (q, r, _) in un))
        nl = len(rs) + len(ss)
        FS = [96, 24+0]
        FS = [96, 45]
        def frag_regs(k):
            base = [96, 124][k]
            return base
        def issue(dl, k):
            base = frag_regs(k); m = {}
            idx = 0
            for r in rs:
                a(f"ds_read_b128 v[{base+4*idx}:{base+4*idx+3}], v6 offset:{64*(63-(dl+16*r))}")
                m[("A", r)] = base+4*idx; idx += 1
            for s_ in ss:
                a(f"ds_read_b128 v[{base+4*idx}:{base+4*idx+3}], v7 offset:{(32*s_ - 2*dl + 32)*16}")
                m[("B", s_)] = base+4*idx; idx += 1
            return m
        m = issue(0, 0)
        for dl in range(16):
            k = dl & 1
            if dl + 1 < 16:
                mn = issue(dl+1, k ^ 1)
                a(f"s_waitcnt lgkmcnt({nl})")
            else:
                a("s_waitcnt lgkmcnt(0)")
            for (q, r, ai) in un:
                c = ACCS[ai]
                fa = m[("A", r)]; fb = m[("B", q-r)]
                a(f"v_mfma_f32_32x32x16_bf16 v[{c}:{c+15}], v[{fa}:{fa+3}], v[{fb}:{fb+3}], v[{c}:{c+15}]")
            if dl + 1 < 16: m = mn
        a.nop(12)
        if w == 0:
            a(f"ds_write_b128 v18, v[72:75] offset:{YB1 + 3*2048 + 64}")
            a(f"ds_write_b128 v18, v[76:79] offset:{YB1 + 3*2048 + 64 + 32}")
            a(f"ds_write_b128 v18, v[64:67] offset:{YB0A}")
            a(f"ds_write_b128 v18, v[68:71] offset:{YB0A + 32}")
            a(f"ds_write_b128 v18, v[88:91] offset:{YB1 + 64}")
            a(f"ds_write_b128 v18, v[92:95] offset:{YB1 + 64 + 32}")
            for i in range(8): a(f"v_mov_b32 v{64+i}, v{80+i}")
        elif w == 1:
            a(f"ds_write_b128 v18, v[72:75] offset:{YB1B + 64}")
            a(f"ds_write_b128 v18, v[76:79] offset:{YB1B + 64 + 32}")
        else:
            q = 2 if w == 2 else 1
            a(f"ds_write_b128 v18, v[72:75] offset:{YB1 + q*2048 + 64}")
            a(f"ds_write_b128 v18, v[76:79] offset:{YB1 + q*2048 + 64 + 32}")
        qf = {0: 0, 1: 3, 2: 2, 3: 1}[w]
        a(f"s_mov_b32 s8, {qf}")
        a(f"ds_read_b64 v[100:101], v19 offset:{(3-qf)*1024 + 16}")
        a(f"ds_read_b64 v[102:103], v19 offset:{(3-qf)*1024}")
        a("s_waitcnt lgkmcnt(0)")
        a("s_barrier")
        a(f"ds_read_b128 v[80:83], v18 offset:{YB1 + qf*2048}")
        a(f"ds_read_b128 v[84:87], v18 offset:{YB1 + qf*2048 + 32}")
        if w == 1:
            a(f"ds_read_b128 v[88:91], v18 offset:{YB1B}")
            a(f"ds_read_b128 v[92:95], v18 offset:{YB1B + 32}")
            a(f"ds_read_b128 v[104:107], v18 offset:{YB0A}")
            a(f"ds_read_b128 v[108:111], v18 offset:{YB0A + 32}")
        a("s_waitcnt lgkmcnt(0)")
        if w == 0:
            for i in range(8): a(f"v_cndmask_b32 v{80+i}, v{80+i}, 0, s[92:93]")
        if w == 1:
            for i in range(8): a(f"v_cndmask_b32 v{88+i}, v{88+i}, 0, s[92:93]")
            for i in range(8): a(f"v_add_f32 v{64+i}, v{64+i}, v{104+i}")
            for i in range(8): a(f"v_add_f32 v{80+i}, v{80+i}, v{88+i}")
        for i in range(8): a(f"v_add_f32 v{64+i}, v{64+i}, v{80+i}")
        if w < 3: a(f"s_branch {labE}")
    a.label(labE)
    for g in range(2):
        ur = 100 + 2*g
        a(f"v_and_b32 v80, 0xffff0000, v{ur+1}")
        a(f"v_lshlrev_b32 v81, 16, v{ur+1}")
        a(f"v_and_b32 v82, 0xffff0000, v{ur}")
        a(f"v_lshlrev_b32 v83, 16, v{ur}")
        for i in range(4): a(f"v_mul_f32 v{80+i}, v44, v{80+i}")
        a("v_cvt_pk_bf16_f32 v84, v80, v81")
        a("v_cvt_pk_bf16_f32 v85, v82, v83")
        y = 64 + 4*g
        a(f"v_cvt_pk_bf16_f32 v86, v{y}, v{y+1}")
        a(f"v_cvt_pk_bf16_f32 v87, v{y+2}, v{y+3}")
        for (src, d0) in ((84, 80), (85, 82), (86, 88), (87, 90)):
            a(f"v_lshlrev_b32 v{d0}, 16, v{src}")
            a(f"v_and_b32 v{d0+1}, 0xffff0000, v{src}")
        for i in range(4): a(f"v_add_f32 v{80+i}, v{88+i}, v{80+i}")
        a(f"v_cvt_pk_bf16_f32 v{92+2*g}, v80, v81")
        a(f"v_cvt_pk_bf16_f32 v{93+2*g}, v82, v83")
    a.nop(2)
    a("v_permlane32_swap_b32 v92, v94")
    a("v_permlane32_swap_b32 v93, v95")
    a("s_sub_u32 s9, s74, 1")
    a("s_lshl_b32 s9, s9, 12")
    a("s_lshl_b32 s8, s8, 10")
    a("s_add_u32 s9, s9, s8")
    a.nop(1)
    a(f"buffer_store_dwordx4 v[92:95], v20, s[88:91], s9 offen {st_flags}")
    a("s_barrier")
    ts.stamp()
    a("s_cmp_lt_u32 s74, s75")
    a("s_cbranch_scc1 ssm_loop")
    if ts.on:
        a("s_waitcnt vmcnt(0)")
        ts.stamp(real=True); ts.flush(base=0x80000)

def k_ssm_dispatch(a, s_j):
    a(f"s_lshr_b32 s10, s{s_j}, 5")
    a(f"s_and_b32 s11, s{s_j}, 31")
    a("s_mul_i32 s14, s10, 80")
    a("s_cmp_lt_u32 s11, 16")
    a("s_cselect_b32 s15, 3, 2")
    a("s_mul_i32 s12, s11, 3")
    a("s_lshl_b32 s13, s11, 1")
    a("s_add_u32 s13, s13, 16")
    a("s_cmp_lt_u32 s11, 16")
    a("s_cselect_b32 s12, s12, s13")
    a("s_add_u32 s14, s14, s12")

def k_ssm(a):
    prologue(a, "ssm_kernel", 147)
    a("s_cmp_ge_u32 s2, 256")
    a("s_cbranch_scc1 ssm_end")
    k_ssm_dispatch(a, 2)
    role_SSM(a, 14, 15)
    a.label("ssm_end")
    a("s_endpgm")
```

```python
import os, sys
from gen import *
import gen_g1, gen_g2, gen_ssm

def k_mid(a):
    prologue(a, "mid_kernel", 211)
    a("s_cmp_ge_u32 s2, 512")
    a("s_cbranch_scc1 mid_end")
    a("s_and_b32 s12, s2, 7")
    a("s_lshr_b32 s13, s2, 3")
    a("s_cmp_ge_u32 s2, 256")
    a("s_cbranch_scc1 mid_g1")
    gen_g1.touch_g1(a, 12, 13, 209)
    gen_ssm.k_ssm_dispatch(a, 2)
    gen_ssm.role_SSM(a, 14, 15)
    a("s_endpgm")
    a.label("mid_g1")
    a("s_sub_u32 s13, s13, 32")
    a("s_cmp_ge_u32 s13, 28")
    a("s_cbranch_scc1 mid_end")
    a("s_and_b32 s14, s13, 3")
    a("s_lshr_b32 s15, s13, 2")
    a("s_lshr_b32 s98, s12, 1")
    a("s_lshl_b32 s98, s98, 2")
    a("s_add_u32 s98, s98, s14")
    a("s_and_b32 s99, s12, 1")
    a("s_mul_i32 s99, s99, 7")
    a("s_add_u32 s99, s99, s15")
    gen_g1.role_G1(a, 98, 99, touch=False)
    a.label("mid_end")
    a("s_endpgm")

if __name__ == "__main__":
    build([("aux_kernel", k_aux, 396, 24576, 128), ("mid_kernel", k_mid, 512, 81920, 216), ("g2_kernel", gen_g2.k_g2, 256, 81920, 224)], sys.argv[1] if len(sys.argv) > 1 else "k3.s")
```

```python
import sys
from gen import *
import gen_g1, gen_g2, gen_ssm, gen_all
def k_empty(a):
    a("s_endpgm")
base = [("aux_kernel", k_aux, 396, 24576, 128), ("mid_kernel", gen_all.k_mid, 512, 81920, 216), ("g2_kernel", gen_g2.k_g2, 256, 81920, 224)]
build(base + [("e1_kernel", k_empty, 256, 0, 8)], "../cdna_kernels/v1.s")
build(base + [("e1_kernel", k_empty, 256, 0, 8), ("e2_kernel", k_empty, 256, 0, 8), ("e3_kernel", k_empty, 256, 0, 8), ("e4_kernel", k_empty, 256, 0, 8)], "../cdna_kernels/v4.s")
build([("e1_kernel", k_empty, 256, 0, 8)] + base, "../cdna_kernels/v1f.s")
```

```python
from gen import *

XR = 0
W1R = 49152
ACC = 64
FS = [128, 160]
VA_W = 8
VA_X = 10
V_XD = 14
V_WD = 18
SX = 64
SW = 80
V_BIAS = 192

EXACT_H1 = True
NT0 = 4
TSCHED = (0, 1, 2, 3, 4)
def role_G1(a, s_rb, s_cb, s_j0, st_flags="", ts=None, pre_epilogue=None, s_xcd=None, s_idx=None):
    srd(a, 48, P_U, SZ_X)
    srd(a, 52, P_W1, SZ_W)
    srd(a, 56, P_B1, F*2)
    srd(a, 60, P_WS, SZ_H, add=WS_H)
    vm = VM(a)
    a(f"s_lshl_b32 s4, s{s_cb}, 3")
    a("s_min_u32 s4, s4, 100")
    a("s_lshl_b32 s5, s4, 5")
    a("v_lshrrev_b32 v1, 3, v0")
    a("v_mul_u32_u24 v1, 1280, v1")
    a("v_and_b32 v2, 7, v0")
    a("v_lshrrev_b32 v3, 4, v0")
    a("v_xor_b32 v2, v2, v3")
    a(f"v_lshl_add_u32 v{V_XD}, v2, 4, v1")
    a(f"v_xor_b32 v{V_XD+1}, 64, v{V_XD}")
    a(f"v_add_u32 v{V_XD+1}, {8*1280-1024}, v{V_XD+1}")
    a(f"v_add_u32 v{V_XD+2}, {2*(8*1280-1024)}, v{V_XD}")
    a(f"v_add_u32 v{V_XD+3}, {2*(8*1280-1024)}, v{V_XD+1}")
    a(f"s_lshl_b32 s6, s{s_rb}, 7")
    a(f"s_lshl_b32 s7, s{S_WAVE}, 5")
    a("s_add_u32 s6, s6, s7")
    a("s_mul_i32 s6, s6, 1280")
    a(f"s_lshl_b32 s7, s{S_WAVE}, 12")
    if XR: a(f"s_add_u32 s7, s7, {XR}")
    a("v_bfe_u32 v4, v0, 1, 3")
    a("v_lshlrev_b32 v5, 1, v3")
    a("v_xor_b32 v4, v4, v5")
    a("v_lshlrev_b32 v4, 5, v4")
    a("v_and_b32 v5, 1, v0")
    a("v_lshl_add_u32 v4, v5, 4, v4")
    a("v_mul_u32_u24 v3, 3456, v3")
    a(f"v_add_u32 v{V_WD}, v3, v4")
    a(f"v_add_u32 v{V_WD+1}, {4*3456-1024}, v{V_WD}")
    a(f"v_add_u32 v{V_WD+2}, {32*3456}, v{V_WD}")
    a(f"v_add_u32 v{V_WD+3}, {32*3456}, v{V_WD+1}")
    a(f"s_mul_i32 s8, s{S_WAVE}, {8*3456}")
    a("s_add_u32 s8, s8, s5")
    a(f"s_lshl_b32 s9, s{S_WAVE}, 11")
    a(f"s_add_u32 s9, s9, {W1R}")
    a(f"s_mov_b32 s90, s{s_j0}")
    def tab(j):
        a("s_lshl_b32 s10, s90, 7")
        a(f"s_add_u32 s{SX+j}, s10, s6")
        a(f"s_mul_i32 s10, s90, {64*3456}")
        a(f"s_add_u32 s{SW+j}, s10, s8")
        a("s_add_u32 s90, s90, 1")
        a("s_cmp_ge_u32 s90, 10")
        a("s_cselect_b32 s90, 0, s90")
    tab(0)
    def dma_x_list(j):
        out = [f"s_add_u32 m0, s7, {(j%3)*16384}", None]
        for ii in range(4):
            out.append((f"buffer_load_dwordx4 v{V_XD+ii}, s[48:51], s{SX+j} offen offset:{ii*1024} lds", ("x", j)))
        return out
    def dma_w_list(g):
        out = [f"s_add_u32 m0, s9, {(g%4)*8192}", None]
        for ii in range(2):
            out.append((f"buffer_load_dwordx4 v{V_WD+2*(g&1)+ii}, s[52:55], s{SW+(g>>1)} offen offset:{ii*1024} lds", ("w", g)))
        return out
    def emit(x):
        if x is None: a.nop(1)
        elif isinstance(x, tuple):
            a(x[0]); vm.issue(x[1])
        else: a(x)
    def dma_x(j):
        for x in dma_x_list(j): emit(x)
    def dma_w(g):
        for x in dma_w_list(g): emit(x)
    if ts: ts.stamp()
    dma_x(0); dma_w(0); dma_w(1)
    TOUCH = s_idx is not None
    VT = 22
    if TOUCH:
        a(f"s_lshl_b32 s10, s{s_idx}, 5")
        a(f"s_lshl_b32 s11, s{S_WAVE}, 3")
        a("s_add_u32 s10, s10, s11")
        a("v_add_u32 v1, s10, v0")
        a("v_mul_u32_u24 v2, 4682, v1")
        a("v_lshrrev_b32 v2, 16, v2")
        a("v_mul_u32_u24 v3, 14, v2")
        a("v_sub_u32 v3, v1, v3")
        a(f"s_and_b32 s11, s{s_xcd}, 1")
        a("s_sub_u32 s10, 13, s11")
        a("v_min_u32 v3, s10, v3")
        a("v_min_u32 v2, 63, v2")
        a("v_mul_u32_u24 v2, 3456, v2")
        a("v_lshl_add_u32 v2, v3, 7, v2")
        a("s_mul_i32 s11, s11, 1792")
        a("v_add_u32 v2, s11, v2")
        a(f"s_mul_i32 s10, s{s_idx}, 19")
        a(f"s_mul_i32 s11, s{S_WAVE}, 5")
        a("s_add_u32 s10, s10, s11")
        a("s_sub_u32 s10, s10, 8")
        a("v_add_u32 v3, s10, v0")
        a("v_min_u32 v3, 511, v3")
        a("v_mul_u32_u24 v3, 1280, v3")
        a(f"s_lshr_b32 s11, s{s_xcd}, 1")
        a(f"s_mul_i32 s11, s11, {512*1280}")
        a("v_add_u32 v3, s11, v3")
        a("v_cmp_gt_u32 vcc, 8, v0")
        a(f"v_mov_b32 v4, {64*3456}")
        a("v_mov_b32 v5, 128")
        a("v_cndmask_b32 v2, v3, v2, vcc")
        a(f"v_cndmask_b32 v{VT+2}, v5, v4, vcc")
        a(f"v_mov_b32 v6, s{P_U}")
        a(f"v_mov_b32 v7, s{P_U+1}")
        a(f"v_mov_b32 v4, s{P_W1}")
        a(f"v_mov_b32 v5, s{P_W1+1}")
        a("v_cndmask_b32 v6, v6, v4, vcc")
        a("v_cndmask_b32 v7, v7, v5, vcc")
        a(f"v_add_co_u32 v{VT}, vcc, v6, v2")
        a(f"v_addc_co_u32 v{VT+1}, vcc, 0, v7, vcc")
    def touch_list():
        return [f"v_add_co_u32 v{VT}, vcc, v{VT}, v{VT+2}", f"v_addc_co_u32 v{VT+1}, vcc, 0, v{VT+1}, vcc",
                (f"s_mov_b64 exec, 0x1fff\nglobal_load_dword v209, v[{VT}:{VT+1}], off\ns_mov_b64 exec, -1", "touch")]
    if TOUCH:
        for _ in range(NT0):
            for x in touch_list(): emit(x)
    for j in range(1, 10): tab(j)
    a("v_lshrrev_b32 v2, 5, v0")
    a("v_lshlrev_b32 v3, 3, v2")
    a(f"s_and_b32 s10, s{S_WAVE}, 1")
    a("s_lshl_b32 s10, s10, 7")
    a("s_add_u32 s10, s10, s5")
    for Fp in range(2):
        for g in range(4):
            i = Fp*4+g
            a(f"buffer_load_dwordx2 v[{V_BIAS+2*i}:{V_BIAS+2*i+1}], v3, s[56:59], s10 offen offset:{(32*Fp+8*g)*2}")
            vm.issue("bias")
    a("v_lshrrev_b32 v1, 4, v0")
    a("v_bfe_u32 v4, v0, 2, 2")
    a("v_lshrrev_b32 v5, 1, v1")
    a("v_lshl_add_u32 v5, v5, 3, v4")
    a("v_lshlrev_b32 v5, 8, v5")
    a("v_and_b32 v6, 3, v0")
    a("v_lshl_add_u32 v5, v6, 3, v5")
    a("v_and_b32 v6, 1, v1")
    a("v_lshl_add_u32 v5, v6, 5, v5")
    a(f"v_add_u32 v5, {W1R}, v5")
    a(f"s_and_b32 s10, s{S_WAVE}, 1")
    a("s_lshl_b32 s10, s10, 1")
    for Fp in range(2):
        a(f"s_add_u32 s11, s10, {Fp}")
        a("v_xor_b32 v6, s11, v4")
        a(f"v_lshl_add_u32 v{VA_W+Fp}, v6, 6, v5")
    a("v_and_b32 v4, 31, v0")
    a("v_bfe_u32 v5, v0, 1, 3")
    a("v_xor_b32 v5, v5, v2")
    a("v_lshlrev_b32 v5, 4, v5")
    a("v_lshl_add_u32 v5, v4, 7, v5")
    a(f"s_lshr_b32 s10, s{S_WAVE}, 1")
    a("s_lshl_b32 s10, s10, 13")
    if XR: a(f"s_add_u32 s10, s10, {XR}")
    a(f"v_add_u32 v{VA_X}, s10, v5")
    for s2 in range(1, 4):
        a(f"v_xor_b32 v{VA_X+s2}, {32*s2}, v{VA_X}")
    for i in range(64): a(f"v_mov_b32 v{ACC+i}, 0")

    def regA(st, s2, Fp): return FS[st] + (s2*2+Fp)*4
    def regB(st, s2, rt): return FS[st] + 16 + (s2*2+rt)*4
    def reads(g, st):
        out = []
        j = g >> 1; hh = g & 1
        for s2 in range(2):
            for rt in range(2):
                out.append(f"ds_read_b128 v[{regB(st,s2,rt)}:{regB(st,s2,rt)+3}], v{VA_X+2*hh+s2} offset:{(j%3)*16384 + rt*4096}")
            for Fp in range(2):
                for h2 in range(2):
                    r_ = regA(st,s2,Fp)+2*h2
                    out.append(f"ds_read_b64_tr_b16 v[{r_}:{r_+1}], v{VA_W+Fp} offset:{(g%4)*8192 + s2*4096 + h2*1024}")
        return out
    vm.wait_for([("x", 0), ("w", 0)])
    a("s_barrier")
    if ts: ts.stamp()
    for r in reads(0, 0): a(r)
    NG = 20
    sched = {i: [] for i in range(NG)}
    sched[0] = [("w", 2), ("x", 1)]
    sched[1] = [("w", 3), ("x", 2), ("w", 4)]
    sched[2] = [("w", 5), ("x", 3), ("w", 6)]
    sched[3] = [("w", 7), ("x", 4)]
    for i in range(4, NG):
        if i + 4 < NG: sched[i].append(("w", i+4))
        if (i & 1) and ((i-1)//2 + 3) < 10: sched[i].append(("x", (i-1)//2 + 3))
    for i in range(NG):
        st = i & 1
        if i + 1 < NG:
            vm.wait_for([("w", i+1), ("x", (i+1) >> 1)])
        a("s_waitcnt lgkmcnt(0)")
        if ts: ts.commit()
        a("s_barrier")
        if ts: ts.stamp()
        nxt = reads(i+1, st ^ 1) if i + 1 < NG else []
        dm = []
        for kind, idx in sched[i]:
            dm += (dma_w_list if kind == "w" else dma_x_list)(idx)
        if TOUCH and i in TSCHED: dm += touch_list()
        mf = []
        for s2 in range(2):
            for Fp in range(2):
                for rt in range(2):
                    c = ACC + (Fp*2+rt)*16
                    mf.append(f"v_mfma_f32_32x32x16_bf16 v[{c}:{c+15}], v[{regA(st,s2,Fp)}:{regA(st,s2,Fp)+3}], v[{regB(st,s2,rt)}:{regB(st,s2,rt)+3}], v[{c}:{c+15}]")
        ri = 0; di = 0
        for m in range(8):
            a(mf[m])
            bud = 24
            while bud > 0 and (ri < len(nxt) or di < len(dm)):
                if di < len(dm) and bud >= 16 and (m % 2 == 1 or ri >= len(nxt)):
                    x = dm[di]; di += 1
                    if x is None:
                        if ri < len(nxt): a(nxt[ri]); ri += 1; bud -= 7
                        else: a.nop(1); bud -= 4
                    elif isinstance(x, tuple): emit(x); bud -= 16
                    else: emit(x); bud -= 4
                elif ri < len(nxt):
                    a(nxt[ri]); ri += 1; bud -= 7
                else:
                    break
        while ri < len(nxt): a(nxt[ri]); ri += 1
        while di < len(dm): emit(dm[di]); di += 1
    if ts: ts.stamp()
    if pre_epilogue: pre_epilogue(a, vm)
    vm.wait_for("bias")
    B = 128
    for i in range(8):
        a(f"v_lshlrev_b32 v{B+4*i}, 16, v{V_BIAS+2*i}")
        a(f"v_and_b32 v{B+4*i+1}, 0xffff0000, v{V_BIAS+2*i}")
        a(f"v_lshlrev_b32 v{B+4*i+2}, 16, v{V_BIAS+2*i+1}")
        a(f"v_and_b32 v{B+4*i+3}, 0xffff0000, v{V_BIAS+2*i+1}")
    a("v_bfe_u32 v1, v0, 4, 1")
    a(f"v_mul_u32_u24 v1, {54*1024}, v1")
    a("v_lshrrev_b32 v2, 5, v0")
    a("v_lshl_add_u32 v1, v2, 8, v1")
    a("v_and_b32 v2, 15, v0")
    a("v_lshl_add_u32 v1, v2, 4, v1")
    a(f"s_lshl_b32 s10, s{s_rb}, 3")
    a(f"s_lshr_b32 s11, s{S_WAVE}, 1")
    a("s_lshl_b32 s11, s11, 2")
    a("s_add_u32 s10, s10, s11")
    a("s_mul_i32 s10, s10, 54")
    a("s_lshr_b32 s11, s4, 1")
    a("s_add_u32 s10, s10, s11")
    a(f"s_and_b32 s11, s{S_WAVE}, 1")
    a("s_lshl_b32 s11, s11, 1")
    a("s_add_u32 s10, s10, s11")
    a("s_lshl_b32 s10, s10, 10")
    a("s_mov_b32 s11, 0xffff0000")
    a.nop(6)
    a(".p2align 3")
    n = 0
    for rt in range(2):
        for Fp in range(2):
            c = ACC + (Fp*2+rt)*16
            o = 160 + 8*(n % 2); n += 1
            T = 24
            for g in range(4):
                cc = c + 4*g; bb = B + (Fp*4+g)*4; t = T + 6*(g & 1)
                if EXACT_H1:
                    a(f"v_cvt_pk_bf16_f32 v{t}, v{cc}, v{cc+1}")
                    a(f"v_cvt_pk_bf16_f32 v{t+1}, v{cc+2}, v{cc+3}")
                    a(f"v_lshlrev_b32 v{t+2}, 16, v{t}")
                    a(f"v_and_b32 v{t+3}, s11, v{t}")
                    a(f"v_lshlrev_b32 v{t+4}, 16, v{t+1}")
                    a(f"v_and_b32 v{t+5}, s11, v{t+1}")
                    a(f"v_pk_add_f32 v[{t+2}:{t+3}], v[{t+2}:{t+3}], v[{bb}:{bb+1}]")
                    a(f"v_pk_add_f32 v[{t+4}:{t+5}], v[{t+4}:{t+5}], v[{bb+2}:{bb+3}]")
                else:
                    a(f"v_pk_add_f32 v[{t+2}:{t+3}], v[{cc}:{cc+1}], v[{bb}:{bb+1}]")
                    a(f"v_pk_add_f32 v[{t+4}:{t+5}], v[{cc+2}:{cc+3}], v[{bb+2}:{bb+3}]")
                a(f"v_cvt_pk_bf16_f32 v{t}, v{t+2}, v{t+3}")
                a(f"v_cvt_pk_bf16_f32 v{t+1}, v{t+4}, v{t+5}")
                a(f"v_pk_max_i16 v{t}, v{t}, 0")
                a(f"v_pk_max_i16 v{t+1}, v{t+1}, 0")
                a(f"v_lshlrev_b32 v{t+2}, 16, v{t}")
                a(f"v_and_b32 v{t+3}, s11, v{t}")
                a(f"v_lshlrev_b32 v{t+4}, 16, v{t+1}")
                a(f"v_and_b32 v{t+5}, s11, v{t+1}")
                a(f"v_pk_mul_f32 v[{t+2}:{t+3}], v[{t+2}:{t+3}], v[{t+2}:{t+3}]")
                a(f"v_pk_mul_f32 v[{t+4}:{t+5}], v[{t+4}:{t+5}], v[{t+4}:{t+5}]")
                a(f"v_cvt_pk_bf16_f32 v{o+2*g}, v{t+2}, v{t+3}")
                a(f"v_cvt_pk_bf16_f32 v{o+2*g+1}, v{t+4}, v{t+5}")
            a.nop(2)
            a(f"v_permlane32_swap_b32 v{o}, v{o+2}")
            a(f"v_permlane32_swap_b32 v{o+1}, v{o+3}")
            a(f"v_permlane32_swap_b32 v{o+4}, v{o+6}")
            a(f"v_permlane32_swap_b32 v{o+5}, v{o+7}")
            a(f"s_add_u32 s12, s10, {(rt*2*54 + Fp)*1024}")
            a.nop(1)
            a(f"buffer_store_dwordx4 v[{o}:{o+3}], v1, s[60:63], s12 offen {st_flags}")
            a(f"buffer_store_dwordx4 v[{o+4}:{o+7}], v1, s[60:63], s12 offen offset:512 {st_flags}")
    if ts: ts.stamp()

def g1_map(a, s_xcd, s_idx):
    a(f"s_and_b32 s14, s{s_idx}, 3")
    a(f"s_lshr_b32 s15, s{s_idx}, 2")
    a(f"s_lshr_b32 s98, s{s_xcd}, 1")
    a("s_lshl_b32 s98, s98, 2")
    a("s_add_u32 s98, s98, s14")
    a(f"s_and_b32 s99, s{s_xcd}, 1")
    a("s_mul_i32 s99, s99, 7")
    a("s_add_u32 s99, s99, s15")
    import os
    if os.environ.get("NOROT") == "1":
        a("s_mov_b32 s97, 0")
    else:
        a("s_mul_i32 s97, s14, 3")
        a("s_add_u32 s97, s97, s15")
        a("s_cmp_ge_u32 s97, 10")
        a("s_cselect_b32 s14, 10, 0")
        a("s_sub_u32 s97, s97, s14")

def touch_g1(a, s_xcd, s_tau, dummy):
    a(f"s_lshl_b32 s10, s{s_tau}, 2")
    a(f"s_add_u32 s10, s10, s{S_WAVE}")
    a("s_mul_i32 s11, s10, 7")
    a("v_add_u32 v1, s11, v0")
    a("v_mul_u32_u24 v2, 4682, v1")
    a("v_lshrrev_b32 v2, 16, v2")
    a("v_mul_u32_u24 v3, 14, v2")
    a("v_sub_u32 v3, v1, v3")
    a(f"s_and_b32 s11, s{s_xcd}, 1")
    a("s_sub_u32 s11, 13, s11")
    a("v_min_u32 v3, s11, v3")
    a("v_min_u32 v2, 63, v2")
    a("v_mul_u32_u24 v2, 3456, v2")
    a("v_lshl_add_u32 v2, v3, 7, v2")
    a(f"s_and_b32 s11, s{s_xcd}, 1")
    a("s_mul_i32 s11, s11, 1792")
    pass
    a("v_add_u32 v2, s11, v2")
    a("s_lshl_b32 s11, s10, 2")
    a("s_sub_u32 s11, s11, 7")
    a("v_add_u32 v3, s11, v0")
    a("v_mul_u32_u24 v3, 1280, v3")
    a(f"s_lshr_b32 s11, s{s_xcd}, 1")
    a(f"s_mul_i32 s11, s11, {512*1280}")
    pass
    a("v_add_u32 v3, s11, v3")
    a("v_cmp_gt_u32 vcc, 7, v0")
    a(f"v_mov_b32 v4, {64*3456}")
    a("v_mov_b32 v5, 128")
    a("v_cndmask_b32 v2, v3, v2, vcc")
    a("v_cndmask_b32 v4, v5, v4, vcc")
    a(f"v_mov_b32 v6, s{P_U}")
    a(f"v_mov_b32 v7, s{P_U+1}")
    a(f"v_mov_b32 v8, s{P_W1}")
    a(f"v_mov_b32 v9, s{P_W1+1}")
    a("v_cndmask_b32 v6, v6, v8, vcc")
    a("v_cndmask_b32 v7, v7, v9, vcc")
    a("v_add_co_u32 v6, vcc, v6, v2")
    a("v_addc_co_u32 v7, vcc, 0, v7, vcc")
    a("s_mov_b64 s[10:11], exec")
    a("s_mov_b64 exec, 0x7ff")
    for r in range(10):
        a(f"global_load_dword v{dummy}, v[6:7], off")
        if r < 9:
            a("v_add_co_u32 v6, vcc, v6, v4")
            a("v_addc_co_u32 v7, vcc, 0, v7, vcc")
    a("s_mov_b64 exec, s[10:11]")

def touch_global(a, s_j, dummy):
    a(f"s_mul_i32 s10, s{s_j}, 148")
    a(f"s_mul_i32 s11, s{S_WAVE}, 37")
    a("s_add_u32 s10, s10, s11")
    a("v_add_u32 v1, s10, v0")
    a("v_lshlrev_b32 v2, 7, v1")
    a(f"v_subrev_u32 v3, {17280*128}, v2")
    a(f"v_min_u32 v3, {SZ_X-128}, v3")
    a("v_cmp_gt_u32 vcc, 17280, v1")
    a(f"v_mov_b32 v6, s{P_U}")
    a(f"v_mov_b32 v7, s{P_U+1}")
    a(f"v_mov_b32 v4, s{P_W1}")
    a(f"v_mov_b32 v5, s{P_W1+1}")
    a("v_cndmask_b32 v2, v3, v2, vcc")
    a("v_cndmask_b32 v6, v6, v4, vcc")
    a("v_cndmask_b32 v7, v7, v5, vcc")
    a("v_add_co_u32 v6, vcc, v6, v2")
    a("v_addc_co_u32 v7, vcc, 0, v7, vcc")
    a("s_mov_b32 exec_lo, -1")
    a("s_mov_b32 exec_hi, 0x1f")
    a(f"global_load_dword v{dummy}, v[6:7], off")
    a("s_mov_b64 exec, -1")

def k_g1(a):
    import os
    prologue(a, "g1_kernel", 211)
    a("s_cmp_ge_u32 s2, 512")
    a("s_cbranch_scc1 g1_end")
    a("s_cmp_ge_u32 s2, 256")
    a("s_cbranch_scc1 g1_main")
    if os.environ.get("NOGT") != "1":
        touch_global(a, 2, 209)
    a("s_endpgm")
    a.label("g1_main")
    a("s_and_b32 s12, s2, 7")
    a("s_lshr_b32 s13, s2, 3")
    a("s_sub_u32 s13, s13, 32")
    a("s_cmp_ge_u32 s13, 28")
    a("s_cbranch_scc1 g1_end")
    g1_map(a, 12, 13)
    a("s_mov_b32 s96, s12")
    a("s_mov_b32 s95, s13")
    ts = TS(a, 210); ts.stamp(real=True); ts.stamp()
    role_G1(a, 98, 99, 97, ts=ts if ts.on else None, s_xcd=96, s_idx=95 if os.environ.get("NOTOUCH") != "1" else None)
    if ts.on:
        a("s_waitcnt vmcnt(0)")
        ts.stamp(); ts.stamp(real=True); ts.flush()
    a.label("g1_end")
    a("s_endpgm")

if __name__ == "__main__":
    build([("g1_kernel", k_g1, 512, 81920, 216)], "k2.s")
```

```python
from gen import *

ACC2 = 128
AF = [8, 44, 80]
NST = 3
RED = 0
LAT = 61440
VB = 116
V_B2 = 212
V_G = 211

def g2_pre(a, s_m, s_c, vm):
    srd(a, 48, P_WS, SZ_H, add=WS_H)
    srd(a, 52, P_WS, SZ_W2F, add=WS_W2F)
    srd(a, 56, P_WS, SZ_AT, add=WS_AT)
    srd(a, 60, P_OUT, SZ_X)
    srd(a, 64, P_WS, L*4, add=WS_G)
    srd(a, 68, P_B2, D*2)
    a("v_lshlrev_b32 v1, 4, v0")
    a("v_add_u32 v120, 4096, v1")
    for rt in range(4):
        a(f"v_add_u32 v{VB+rt}, {rt*54*1024}, v1")
    a("v_lshrrev_b32 v3, 4, v0")
    a("v_lshlrev_b32 v3, 3, v3")
    a(f"s_mul_i32 s7, s{s_c}, 160")
    for t in range(5):
        a(f"buffer_load_dwordx2 v[{V_B2+2*t}:{V_B2+2*t+1}], v3, s[68:71], s7 offen offset:{32*t}")
        vm.issue("b2")

def role_G2(a, s_m, s_c, s_rot, ld_flags="", wait_w2=None, wait_main=None, wait_epi=None, ts=None):
    vm = VM(a)
    g2_pre(a, s_m, s_c, vm)
    a(f"s_mul_i32 s4, s{s_c}, {54*5120}")
    a(f"s_mul_i32 s5, s{s_m}, {4*54*1024}")
    a(f"s_add_u32 s8, s{s_rot}, s{S_WAVE}")
    a("s_cmp_ge_u32 s8, 54")
    a("s_cselect_b32 s10, 54, 0")
    a("s_sub_u32 s8, s8, s10")
    a("s_mov_b32 s9, s8")
    def adv(s):
        return [f"s_add_u32 s{s}, s{s}, 4", f"s_cmp_ge_u32 s{s}, 54", "s_cselect_b32 s10, 54, 0", f"s_sub_u32 s{s}, s{s}, s10"]
    def loadA(it):
        st = it % NST
        out = ["s_mul_i32 s6, s8, 5120", "s_add_u32 s6, s6, s4"]
        for t in range(5):
            if t < 4: out.append((f"buffer_load_dwordx4 v[{AF[st]+4*t}:{AF[st]+4*t+3}], v1, s[52:55], s6 offen offset:{1024*t}", ("A", it)))
            else:     out.append((f"buffer_load_dwordx4 v[{AF[st]+4*t}:{AF[st]+4*t+3}], v120, s[52:55], s6 offen", ("A", it)))
        return out + adv(8)
    def loadB(it):
        st = it % NST
        out = ["s_lshl_b32 s7, s9, 10", "s_add_u32 s7, s7, s5"]
        for rt in range(4):
            out.append((f"buffer_load_dwordx4 v[{AF[st]+20+4*rt}:{AF[st]+20+4*rt+3}], v{VB+rt}, s[48:51], s7 offen {ld_flags}", ("B", it)))
        return out + adv(9)
    def emit(x):
        if isinstance(x, tuple): a(x[0]); vm.issue(x[1])
        else: a(x)
    for i in range(80): a(f"v_mov_b32 v{ACC2+i}, 0")
    NIT = 14
    if wait_w2: wait_w2(a, vm)
    for x in loadA(0) + loadA(1): emit(x)
    if wait_main: wait_main(a, vm)
    for x in loadB(0) + loadB(1): emit(x)
    if ts: ts.stamp()
    lab_skip = a.newlabel("g2_skip")
    def epi_loads():
        out = []
        out += ["v_lshrrev_b32 v3, 3, v0", "v_lshlrev_b32 v3, 12, v3", "v_and_b32 v4, 7, v0", "v_lshl_add_u32 v3, v4, 4, v3",
                f"s_mul_i32 s6, s{s_c}, {80*4096}", f"s_lshl_b32 s7, s{s_m}, 7", "s_add_u32 s6, s6, s7",
                f"s_lshl_b32 s7, s{S_WAVE}, 15", "s_add_u32 s6, s6, s7", f"s_lshl_b32 s7, s{S_WAVE}, 10", f"s_add_u32 s7, s7, {LAT}"]
        for z in range(3):
            out += ["s_mov_b32 m0, s7", "s_add_u32 s7, s7, 4096", (f"buffer_load_dwordx4 v3, s[56:59], s6 offen {ld_flags} lds", "aT"), f"s_add_u32 s6, s6, {32*4096}"]
        out += ["v_and_b32 v4, 15, v0", "v_lshlrev_b32 v4, 2, v4", f"s_lshl_b32 s6, s{s_m}, 8", f"s_lshl_b32 s7, s{S_WAVE}, 6", "s_add_u32 s6, s6, s7",
                (f"buffer_load_dword v{V_G}, v4, s[64:67], s6 offen {ld_flags}", "g")]
        return out
    EPI_AT = None if wait_epi else 2
    for it in range(NIT):
        st = it % NST
        if it == NIT-1:
            a(f"s_cmp_ge_u32 s{S_WAVE}, 2")
            a(f"s_cbranch_scc1 {lab_skip}")
        ld = []
        if it + 2 < NIT: ld = loadA(it+2) + loadB(it+2)
        if EPI_AT is not None and it == EPI_AT: ld = ld + epi_loads()
        vm.wait_for([("A", it), ("B", it)])
        mf = []
        for rt in range(4):
            for t in range(5):
                c = ACC2 + (rt*5+t)*4
                mf.append(f"v_mfma_f32_16x16x32_bf16 v[{c}:{c+3}], v[{AF[st]+4*t}:{AF[st]+4*t+3}], v[{AF[st]+20+4*rt}:{AF[st]+20+4*rt+3}], v[{c}:{c+3}]")
        li = 0
        for m in range(20):
            a(mf[m])
            if li < len(ld): emit(ld[li]); li += 1
        while li < len(ld): emit(ld[li]); li += 1
    a.label(lab_skip)
    if ts: ts.stamp()
    if wait_epi:
        wait_epi(a, vm)
        for x in epi_loads(): emit(x)
    a.nop(4)
    for rt in range(4):
        lab = a.newlabel("g2_nw")
        a(f"s_cmp_eq_u32 s{S_WAVE}, {rt}")
        a(f"s_cbranch_scc1 {lab}")
        a(f"s_sub_u32 s6, s{S_WAVE}, {rt+1}")
        a("s_and_b32 s6, s6, 3")
        a("s_mul_i32 s6, s6, 5120")
        a(f"s_add_u32 s6, s6, {RED + rt*15360}")
        a("v_add_u32 v5, s6, v1")
        for t in range(5):
            c = ACC2 + (rt*5+t)*4
            a(f"ds_write_b128 v5, v[{c}:{c+3}] offset:{1024*t}")
        a.label(lab)
    for rt in range(4):
        lab = a.newlabel("g2_mv")
        a(f"s_cmp_lg_u32 s{S_WAVE}, {rt}")
        a(f"s_cbranch_scc1 {lab}")
        for i in range(0, 20, 2):
            a(f"v_pk_mov_b32 v[{8+i}:{9+i}], v[{ACC2+rt*20+i}:{ACC2+rt*20+i+1}], v[{ACC2+rt*20+i}:{ACC2+rt*20+i+1}] op_sel:[0,1]")
        a.label(lab)
    a("v_lshrrev_b32 v3, 4, v0")
    a("v_bfe_u32 v4, v0, 2, 2")
    a("v_lshl_add_u32 v4, v3, 2, v4")
    a("v_lshlrev_b32 v4, 7, v4")
    a("v_and_b32 v6, 3, v0")
    a("v_lshl_add_u32 v4, v6, 3, v4")
    a(f"s_lshl_b32 s6, s{S_WAVE}, 5")
    a(f"s_add_u32 s6, s6, {LAT}")
    a("v_add_u32 v4, s6, v4")
    a(f"s_mul_i32 s6, s{S_WAVE}, 15360")
    if RED: a(f"s_add_u32 s6, s6, {RED}")
    a("v_add_u32 v5, s6, v1")
    a("v_and_b32 v2, 15, v0")
    a("v_mul_u32_u24 v2, 1280, v2")
    a("v_and_b32 v6, 1, v3")
    a("v_lshlrev_b32 v7, 3, v3")
    a("v_mul_u32_u24 v6, 24, v6")
    a("v_add3_u32 v31, v2, v7, v6")
    a("v_add_u32 v29, v2, v7")
    a(f"s_lshl_b32 s6, s{s_m}, 6")
    a(f"s_lshl_b32 s7, s{S_WAVE}, 4")
    a("s_add_u32 s6, s6, s7")
    a("s_mul_i32 s6, s6, 1280")
    a(f"s_mul_i32 s7, s{s_c}, 160")
    a("s_add_u32 s6, s6, s7")
    a("s_mov_b32 s11, 0xffff0000")
    a("s_waitcnt vmcnt(0) lgkmcnt(0)")
    vm.q = []
    a("s_barrier")
    if ts: ts.stamp()
    for i in range(3):
        for t in range(5):
            a(f"ds_read_b128 v[{32+(i*5+t)*4}:{35+(i*5+t)*4}], v5 offset:{i*5120+1024*t}")
    for t in range(5):
        a(f"ds_read_b64_tr_b16 v[{96+2*t}:{97+2*t}], v4 offset:{2048*t}")
    a(f"v_sub_f32 v30, 1.0, v{V_G}")
    a("v_cvt_pk_bf16_f32 v30, v30, v30")
    a("v_lshlrev_b32 v122, 16, v30")
    a("v_mov_b32 v123, v122")
    a(f"v_mov_b32 v124, v{V_G}")
    a(f"v_mov_b32 v125, v{V_G}")
    for t in range(5):
        a(f"v_lshlrev_b32 v{128+4*t}, 16, v{V_B2+2*t}")
        a(f"v_and_b32 v{129+4*t}, s11, v{V_B2+2*t}")
        a(f"v_lshlrev_b32 v{130+4*t}, 16, v{V_B2+2*t+1}")
        a(f"v_and_b32 v{131+4*t}, s11, v{V_B2+2*t+1}")
    a("s_waitcnt lgkmcnt(15)")
    for i in range(3):
        a(f"s_waitcnt lgkmcnt({15-5*(i+1)+5 if False else 5*(2-i)+5})")
        for k in range(0, 20, 2):
            a(f"v_pk_add_f32 v[{8+k}:{9+k}], v[{8+k}:{9+k}], v[{32+i*20+k}:{33+i*20+k}]")
    a("s_waitcnt lgkmcnt(0)")
    P = 108
    for t in range(5):
        c = 8 + 4*t; T = 32 + 12*(t & 1); bb = 128 + 4*t
        def unp(dst, src):
            a(f"v_lshlrev_b32 v{dst}, 16, v{src}"); a(f"v_and_b32 v{dst+1}, s11, v{src}")
        a(f"v_cvt_pk_bf16_f32 v{T}, v{c}, v{c+1}")
        a(f"v_cvt_pk_bf16_f32 v{T+1}, v{c+2}, v{c+3}")
        unp(T+2, T); unp(T+4, T+1)
        a(f"v_pk_add_f32 v[{T+2}:{T+3}], v[{T+2}:{T+3}], v[{bb}:{bb+1}]")
        a(f"v_pk_add_f32 v[{T+4}:{T+5}], v[{T+4}:{T+5}], v[{bb+2}:{bb+3}]")
        a(f"v_cvt_pk_bf16_f32 v{T}, v{T+2}, v{T+3}")
        a(f"v_cvt_pk_bf16_f32 v{T+1}, v{T+4}, v{T+5}")
        unp(T+2, T); unp(T+4, T+1)
        unp(T+6, 96+2*t); unp(T+8, 97+2*t)
        a(f"v_pk_mul_f32 v[{T+2}:{T+3}], v[{T+2}:{T+3}], v[122:123]")
        a(f"v_pk_mul_f32 v[{T+4}:{T+5}], v[{T+4}:{T+5}], v[122:123]")
        a(f"v_pk_mul_f32 v[{T+6}:{T+7}], v[{T+6}:{T+7}], v[124:125]")
        a(f"v_pk_mul_f32 v[{T+8}:{T+9}], v[{T+8}:{T+9}], v[124:125]")
        a(f"v_cvt_pk_bf16_f32 v{T}, v{T+2}, v{T+3}")
        a(f"v_cvt_pk_bf16_f32 v{T+1}, v{T+4}, v{T+5}")
        a(f"v_cvt_pk_bf16_f32 v{T+10}, v{T+6}, v{T+7}")
        a(f"v_cvt_pk_bf16_f32 v{T+11}, v{T+8}, v{T+9}")
        unp(T+2, T); unp(T+4, T+1); unp(T+6, T+10); unp(T+8, T+11)
        a(f"v_pk_add_f32 v[{T+2}:{T+3}], v[{T+6}:{T+7}], v[{T+2}:{T+3}]")
        a(f"v_pk_add_f32 v[{T+4}:{T+5}], v[{T+8}:{T+9}], v[{T+4}:{T+5}]")
        a(f"v_cvt_pk_bf16_f32 v{P+2*t}, v{T+2}, v{T+3}")
        a(f"v_cvt_pk_bf16_f32 v{P+2*t+1}, v{T+4}, v{T+5}")
        if t in (1, 3):
            o = P + 4*(t//2)
            a.nop(2)
            a(f"v_permlane16_swap_b32 v{o}, v{o+2}")
            a(f"v_permlane16_swap_b32 v{o+1}, v{o+3}")
            a.nop(1)
            a(f"buffer_store_dwordx4 v[{o}:{o+3}], v31, s[60:63], s6 offen offset:{64*(t//2)}")
    a(f"buffer_store_dwordx2 v[{P+8}:{P+9}], v29, s[60:63], s6 offen offset:128")
    if ts: ts.stamp()

def g2_map(a, s_xcd, s_idx):
    import os
    a(f"s_lshl_b32 s14, s{s_xcd}, 2")
    a(f"s_and_b32 s15, s{s_idx}, 3")
    a("s_add_u32 s98, s14, s15")
    a(f"s_lshr_b32 s99, s{s_idx}, 2")
    if os.environ.get("NOROT2") == "1":
        a("s_mov_b32 s97, 0")
    else:
        a("s_mul_i32 s97, s15, 13")
        a("s_mul_i32 s14, s99, 7")
        a("s_add_u32 s97, s97, s14")
        a("s_cmp_ge_u32 s97, 54")
        a("s_cselect_b32 s14, 54, 0")
        a("s_sub_u32 s97, s97, s14")

def k_g2(a):
    prologue(a, "g2_kernel", 222)
    a("s_cmp_ge_u32 s2, 256")
    a("s_cbranch_scc1 g2_end")
    a("s_and_b32 s12, s2, 7")
    a("s_lshr_b32 s13, s2, 3")
    g2_map(a, 12, 13)
    ts = TS(a, 210); ts.stamp(real=True); ts.stamp()
    role_G2(a, 98, 99, 97, ts=ts if ts.on else None)
    if ts.on:
        a("s_waitcnt vmcnt(0)")
        ts.stamp(); ts.stamp(real=True); ts.flush(base=0x40000)
    a.label("g2_end")
    a("s_endpgm")
```

```python
import sys
from asmlib import *

L, D, F, N = 2048, 640, 1728, 128
UT_RS = 4096
WS_UT   = 0x0
WS_H    = 0x300000
WS_W2F  = 0xA00000
WS_AT   = 0xD00000
WS_G    = 0x1000000
WS_FLAG = 0x1010000
SZ_X  = L*D*2
SZ_UT = D*UT_RS
SZ_H  = 128*54*1024
SZ_W2F = 8*54*5*1024
SZ_AT = D*4096
SZ_W  = D*F*2
OOB = 0x40000000

P_U, P_LAR, P_AIM, P_CR, P_CI, P_LDT, P_DSK, P_BX, P_W1, P_B1, P_W2, P_B2, P_GW, P_OUT, P_DBG, P_WS = [16+2*i for i in range(16)]
S_WAVE = 3

def prologue(a, name, dummy, pf_lanes=16):
    import os
    a("s_getpc_b64 s[12:13]")
    a("s_load_dwordx16 s[16:31], s[0:1], 0")
    a("s_load_dwordx16 s[32:47], s[0:1], 64")
    a("v_lshrrev_b32 v1, 6, v0")
    if os.environ.get("NOPF") != "1":
        a("s_lshr_b32 s4, s2, 3")
        a("s_and_b32 s4, s4, 31")
        a(f"s_mul_i32 s4, s4, {pf_lanes*128}")
        a("v_lshlrev_b32 v2, 7, v0")
        a("v_add_u32 v2, s4, v2")
        a(f"v_min_u32 v2, {name}_end-{name}-8, v2")
        a(f"v_cmp_gt_u32 vcc, {pf_lanes}, v0")
        a("s_and_saveexec_b64 s[4:5], vcc")
        lab = a.newlabel("pf_skip")
        a(f"s_cbranch_execz {lab}")
        a(f"global_load_dword v{dummy}, v2, s[12:13]")
        a.label(lab)
        a("s_mov_b64 exec, s[4:5]")
    a("v_and_b32 v0, 63, v0")
    a("v_readfirstlane_b32 s3, v1")
    a("s_waitcnt lgkmcnt(0)")

WS_TS = 0x1100000
class TS:
    def __init__(self, a, vreg):
        import os
        self.a = a; self.n = 0; self.on = os.environ.get("TS") == "1"; self.v = vreg; self.pend = None
        if self.on: a(f"v_mov_b32 v{vreg}, 0")
    def commit(self):
        if not self.on or self.pend is None: return
        self.a(f"v_writelane_b32 v{self.v}, s76, {self.pend}")
        self.pend = None
    def stamp(self, real=False, wait=False):
        if not self.on: return
        a = self.a
        if self.pend is not None:
            a("s_waitcnt lgkmcnt(0)"); self.commit()
        a("s_memrealtime s[76:77]" if real else "s_memtime s[76:77]")
        self.pend = self.n; self.n += 1
    def flush(self, slot_sreg=2, base=0):
        if not self.on: return
        a = self.a
        a("s_waitcnt lgkmcnt(0)"); self.commit()
        srd(a, 72, P_WS, 0x100000, add=WS_TS + base)
        a(f"s_lshl_b32 s100, s{slot_sreg}, 2")
        a(f"s_add_u32 s100, s100, s{S_WAVE}")
        a("s_lshl_b32 s100, s100, 8")
        a("v_lshlrev_b32 v1, 2, v0")
        a(f"buffer_store_dword v{self.v}, v1, s[72:75], s100 offen")

def div10(a, dst_q, dst_r, src, tmp):
    a(f"v_mul_u32_u24 v{dst_q}, 6554, v{src}")
    a(f"v_lshrrev_b32 v{dst_q}, 16, v{dst_q}")
    a(f"v_mul_u32_u24 v{tmp}, 10, v{dst_q}")
    a(f"v_sub_u32 v{dst_r}, v{src}, v{tmp}")

def role_T(a, s_m, s_c, LT1, LT2, st_flags=""):
    srd(a, 48, P_U, SZ_X)
    srd(a, 52, P_WS, SZ_UT, add=WS_UT)
    a(f"s_mul_i32 s4, s{s_m}, {64*1280}")
    a(f"s_mul_i32 s5, s{s_c}, 160")
    a("s_add_u32 s4, s4, s5")
    for z in range(3):
        a(f"s_lshl_b32 s6, s{S_WAVE}, 6")
        a(f"s_add_u32 s6, s6, {256*z}")
        a("v_add_u32 v1, s6, v0")
        div10(a, 2, 3, 1, 4)
        a("v_mul_u32_u24 v2, 1280, v2")
        a("v_lshlrev_b32 v3, 4, v3")
        a("v_add_u32 v2, v2, v3")
        if z == 2:
            a("v_mov_b32 v5, 0x40000000")
            a("v_cmp_gt_u32 vcc, 640, v1")
            a.nop(2)
            a("v_cndmask_b32 v2, v5, v2, vcc")
        a(f"s_lshl_b32 s7, s{S_WAVE}, 10")
        a(f"s_add_u32 s7, s7, {LT1 + 4096*z}")
        a("s_mov_b32 m0, s7")
        a.nop(1)
        a("buffer_load_dwordx4 v2, s[48:51], s4 offen lds")
    a("v_lshrrev_b32 v1, 4, v0")
    a("v_bfe_u32 v2, v0, 2, 2")
    a("v_and_b32 v3, 3, v0")
    a("v_lshlrev_b32 v4, 2, v1")
    a("v_sub_u32 v4, v4, v2")
    a(f"s_lshl_b32 s6, s{S_WAVE}, 4")
    a("s_add_u32 s6, s6, 3")
    a("v_add_u32 v4, s6, v4")
    a("v_mul_u32_u24 v4, 160, v4")
    a("v_lshlrev_b32 v3, 3, v3")
    a("v_add_u32 v4, v4, v3")
    a(f"v_add_u32 v4, {LT1}, v4")
    a("v_and_b32 v5, 15, v0")
    a("v_mul_u32_u24 v5, 144, v5")
    a("v_lshlrev_b32 v6, 3, v1")
    a("v_sub_u32 v5, v5, v6")
    a(f"s_lshl_b32 s6, s{S_WAVE}, 5")
    a(f"s_sub_u32 s6, {LT2 + 120}, s6")
    a("v_add_u32 v5, s6, v5")
    a("s_waitcnt vmcnt(0)")
    a("s_barrier")
    for t in range(5):
        a(f"ds_read_b64_tr_b16 v[{8+2*t}:{9+2*t}], v4 offset:{32*t}")
    for t in range(5):
        a(f"s_waitcnt lgkmcnt({4-t})")
        a(f"ds_write_b64 v5, v[{8+2*t}:{9+2*t}] offset:{2304*t}")
    a("v_lshrrev_b32 v1, 3, v0")
    a("v_and_b32 v2, 7, v0")
    a("v_mul_u32_u24 v3, 144, v1")
    a("v_lshlrev_b32 v2, 4, v2")
    a("v_add_u32 v3, v3, v2")
    a(f"s_mul_i32 s6, s{S_WAVE}, 1152")
    a(f"s_add_u32 s6, s6, {LT2}")
    a("v_add_u32 v3, s6, v3")
    a(f"v_mul_u32_u24 v1, {UT_RS}, v1")
    a("v_add_u32 v1, v1, v2")
    a(f"s_mul_i32 s6, s{s_c}, {80*UT_RS}")
    a(f"s_mul_i32 s7, s{S_WAVE}, {8*UT_RS}")
    a("s_add_u32 s6, s6, s7")
    a(f"s_lshl_b32 s7, s{s_m}, 7")
    a("s_sub_u32 s6, s6, s7")
    a("s_add_u32 s6, s6, 3968")
    a("s_waitcnt lgkmcnt(0)")
    a("s_barrier")
    a("ds_read_b128 v[8:11], v3")
    a(f"ds_read_b128 v[12:15], v3 offset:{4*1152}")
    lab = a.newlabel("T_skip")
    a("s_waitcnt lgkmcnt(1)")
    a(f"buffer_store_dwordx4 v[8:11], v1, s[52:55], s6 offen {st_flags}")
    a(f"s_add_u32 s6, s6, {32*UT_RS}")
    a("s_waitcnt lgkmcnt(0)")
    a(f"buffer_store_dwordx4 v[12:15], v1, s[52:55], s6 offen {st_flags}")
    a(f"s_cmp_ge_u32 s{S_WAVE}, 2")
    a(f"s_cbranch_scc1 {lab}")
    a(f"ds_read_b128 v[16:19], v3 offset:{8*1152}")
    a(f"s_add_u32 s6, s6, {32*UT_RS}")
    a("s_waitcnt lgkmcnt(0)")
    a(f"buffer_store_dwordx4 v[16:19], v1, s[52:55], s6 offen {st_flags}")
    a.label(lab)

def role_W2R(a, s_u, LW, st_flags=""):
    srd(a, 56, P_W2, SZ_W)
    srd(a, 60, P_WS, SZ_W2F, add=WS_W2F)
    a(f"s_mul_i32 s4, s{s_u}, 1214")
    a("s_lshr_b32 s4, s4, 16")
    a("s_mul_i32 s5, s4, 54")
    a(f"s_sub_u32 s5, s{s_u}, s5")
    a(f"s_mul_i32 s6, s5, {32*1280}")
    a("s_mul_i32 s7, s4, 160")
    a("s_add_u32 s6, s6, s7")
    a(f"s_mul_i32 s8, s{S_WAVE}, 5120")
    a(f"s_add_u32 s8, s8, {LW}")
    for i in range(5):
        a(f"v_add_u32 v1, {64*i}, v0")
        div10(a, 2, 3, 1, 4)
        a("v_mul_u32_u24 v2, 1280, v2")
        a("v_lshlrev_b32 v3, 4, v3")
        a("v_add_u32 v2, v2, v3")
        a(f"s_add_u32 s9, s8, {1024*i}")
        a("s_mov_b32 m0, s9")
        a.nop(1)
        a("buffer_load_dwordx4 v2, s[56:59], s6 offen lds")
    a("v_lshrrev_b32 v1, 4, v0")
    a("v_bfe_u32 v2, v0, 2, 2")
    a("v_and_b32 v3, 3, v0")
    a("v_lshl_add_u32 v4, v1, 3, v2")
    a("v_mul_u32_u24 v4, 160, v4")
    a("v_lshl_add_u32 v4, v3, 3, v4")
    a("v_add_u32 v4, s8, v4")
    a("v_lshlrev_b32 v5, 4, v0")
    a(f"s_mul_i32 s9, s{s_u}, 5120")
    a("s_waitcnt vmcnt(0)")
    for t in range(5):
        a(f"ds_read_b64_tr_b16 v[{8+4*t}:{9+4*t}], v4 offset:{32*t}")
        a(f"ds_read_b64_tr_b16 v[{10+4*t}:{11+4*t}], v4 offset:{640+32*t}")
    for t in range(5):
        a(f"s_waitcnt lgkmcnt({8-2*t})")
        a(f"buffer_store_dwordx4 v[{8+4*t}:{11+4*t}], v5, s[60:63], s9 offen offset:{1024*t} {st_flags}" if 1024*t < 4096 else
          f"buffer_store_dwordx4 v[{8+4*t}:{11+4*t}], v6, s[60:63], s9 offen {st_flags}")
        if t == 3: a("v_add_u32 v6, 4096, v5")

def role_gate(a, s_row0, ngroups, st_flags=""):
    srd(a, 48, P_U, SZ_X)
    srd(a, 64, P_GW, D*2)
    srd(a, 68, P_WS, L*4, add=WS_G)
    a("v_and_b32 v1, 15, v0")
    a("v_lshlrev_b32 v1, 4, v1")
    a("v_lshrrev_b32 v2, 4, v0")
    a("v_mul_u32_u24 v3, 1280, v2")
    a("v_add_u32 v3, v3, v1")
    for z in range(5):
        a(f"buffer_load_dwordx4 v[{40+4*z}:{43+4*z}], v1, s[64:67], 0 offen offset:{256*z}")
    a(f"s_mul_i32 s4, s{s_row0}, 1280")
    for g in range(ngroups):
        for z in range(5):
            a(f"buffer_load_dwordx4 v[{8+4*z}:{11+4*z}], v3, s[48:51], s4 offen offset:{256*z}")
        if g == 0:
            a("s_waitcnt vmcnt(5)")
            for i in range(20):
                a(f"v_lshlrev_b32 v{60+2*i}, 16, v{40+i}")
                a(f"v_and_b32 v{61+2*i}, 0xffff0000, v{40+i}")
        a("v_mov_b32 v4, 0")
        a("v_mov_b32 v5, 0")
        a("s_waitcnt vmcnt(0)")
        for i in range(20):
            a(f"v_lshlrev_b32 v30, 16, v{8+i}")
            a(f"v_and_b32 v31, 0xffff0000, v{8+i}")
            a(f"v_mul_f32 v30, v30, v{60+2*i}")
            a(f"v_mul_f32 v31, v31, v{61+2*i}")
            a("v_cvt_pk_bf16_f32 v32, v30, v31")
            a("v_lshlrev_b32 v30, 16, v32")
            a("v_and_b32 v31, 0xffff0000, v32")
            a("v_add_f32 v4, v4, v30")
            a("v_add_f32 v5, v5, v31")
        a("v_add_f32 v4, v4, v5")
        for sh in (8, 4, 2, 1):
            a.nop(2)
            a(f"v_add_f32_dpp v4, v4, v4 row_ror:{sh} row_mask:0xf bank_mask:0xf")
        a("v_cvt_pk_bf16_f32 v4, v4, v4")
        a("v_lshlrev_b32 v4, 16, v4")
        a("v_mul_f32 v5, 0xbfb8aa3b, v4")
        a("v_exp_f32 v5, v5")
        a.nop(1)
        a("v_add_f32 v5, 1.0, v5")
        a("v_rcp_f32 v5, v5")
        a.nop(1)
        a("v_cvt_pk_bf16_f32 v5, v5, v5")
        a("v_lshlrev_b32 v5, 16, v5")
        a("v_lshlrev_b32 v6, 2, v2")
        a("v_mov_b32 v7, 0x40000000")
        a("v_cmp_eq_u32 vcc, 0, v1")
        a.nop(2)
        a("v_cndmask_b32 v6, v7, v6, vcc")
        a(f"s_lshl_b32 s5, s{s_row0}, 2")
        a(f"s_add_u32 s5, s5, {16*g}")
        a(f"buffer_store_dword v5, v6, s[68:71], s5 offen {st_flags}")
        a(f"s_add_u32 s4, s4, {4*1280}")

def k_aux(a):
    prologue(a, "aux_kernel", 127)
    a("s_cmp_ge_u32 s2, 256")
    a("s_cbranch_scc1 aux_not_T")
    a("s_lshr_b32 s10, s2, 3")
    a("s_and_b32 s11, s2, 7")
    role_T(a, 10, 11, 0, 12288)
    a("s_endpgm")
    a.label("aux_not_T")
    a("s_cmp_ge_u32 s2, 364")
    a("s_cbranch_scc1 aux_not_W")
    a("s_sub_u32 s10, s2, 256")
    a("s_lshl_b32 s10, s10, 2")
    a(f"s_add_u32 s10, s10, s{S_WAVE}")
    role_W2R(a, 10, 0)
    a("s_endpgm")
    a.label("aux_not_W")
    a("s_cmp_ge_u32 s2, 396")
    a("s_cbranch_scc1 aux_end")
    a("s_sub_u32 s10, s2, 364")
    a("s_lshl_b32 s10, s10, 6")
    a(f"s_lshl_b32 s11, s{S_WAVE}, 4")
    a("s_add_u32 s10, s10, s11")
    role_gate(a, 10, 4)
    a.label("aux_end")
    a("s_endpgm")

HEADER = open("gated_mix__ssm_conv_s4d__dense_activation_squared_relu__prompt.s.ref").read().split("; Override")[0]

def build(kernels, fn):
    s = HEADER
    for (name, fnc, grid, lds, vg) in kernels:
        s += f"; @launch kernel={name} grid=({grid},1,1) block=(256,1,1) lds={lds}\n"
    s += '.amdgcn_target "amdgcn-amd-amdhsa--gfx950"\n.text\n'
    for (name, fnc, grid, lds, vg) in kernels:
        a = Asm()
        a._lab = hash(name) % 1000 * 1000
        fnc(a)
        s += kernel_header(name) + a.text() + f"{name}_end:\n"
    s += '.section .rodata,"a"\n'
    for (name, fnc, grid, lds, vg) in kernels:
        s += kernel_desc(name, vg)
    open(fn, "w").write(s)

if __name__ == "__main__":
    build([("aux_kernel", k_aux, 396, 24576, 128)], "k1.s")
```

```python
from gen import *
import math, struct
import numpy as np

KP   = 0
XX   = 5120
SC   = 9216
TA_  = 9344
TB_  = TA_ + 28*528
UC   = 41024
YB1  = TA_
YB1B = TA_ + 8448
YB0A = TA_ + 8448 + 2304
PS = 2560
ROWS = {0:0,1:1,2:2,3:3,4:256,5:258,6:260,7:262,8:4,9:5,10:6,11:7,12:264,13:512,14:516,15:520,16:1024,17:1032,18:1280,19:1288,20:768,21:772,22:776,24:1536,25:1544,26:1792,27:1800}
ROW_OF = {p: r for r, p in ROWS.items()}
def f32(x): return "0x%08x" % struct.unpack("<I", struct.pack("<f", x))[0]
LOG2E = math.log2(math.e)
L2E_HI = float(np.float32(LOG2E)); L2E_LO = LOG2E - L2E_HI
PR = 32
UD = 40
DT, RHO, TH, DSK = 38, 48, 49, 50

def exp_acc(a, dst, src, t0, t1):
    a(f"v_mul_f32 v{t0}, s70, v{src}")
    a(f"v_fma_f32 v{t1}, v{src}, s70, -v{t0}")
    a(f"v_fma_f32 v{t1}, v{src}, s71, v{t1}")
    a(f"v_exp_f32 v{dst}, v{t0}")
    a(f"v_mul_f32 v{t1}, s72, v{t1}")
    a.nop(1)
    a(f"v_fma_f32 v{dst}, v{dst}, v{t1}, v{dst}")
def bf16r(a, dst, src):
    a(f"v_cvt_pk_bf16_f32 v{dst}, v{src}, v{src}")
    a(f"v_lshlrev_b32 v{dst}, 16, v{dst}")
def cexp_multi(a, items):
    for (d, p, t) in items:
        a(f"v_mul_f32 v{t}, {f32(float(p))}, v{RHO}")
        a(f"v_mul_f32 v{t+1}, {f32(float(p))}, v{TH}")
    for (d, p, t) in items:
        a(f"v_exp_f32 v{t}, v{t}")
        a(f"v_fract_f32 v{t+1}, v{t+1}")
    for (d, p, t) in items:
        a(f"v_cos_f32 v{t+2}, v{t+1}")
        a(f"v_sin_f32 v{t+1}, v{t+1}")
    a.nop(1)
    for (d, p, t) in items:
        a(f"v_mul_f32 v{d}, v{t}, v{t+2}")
        a(f"v_mul_f32 v{d+1}, v{t}, v{t+1}")
def cmul1(a, d, x, y):
    a(f"v_pk_mul_f32 v[{d}:{d+1}], v[{x}:{x+1}], v[{y}:{y+1}] op_sel:[0,0] op_sel_hi:[0,1]")
def cmul2(a, d, x, y):
    a(f"v_pk_fma_f32 v[{d}:{d+1}], v[{x}:{x+1}], v[{y}:{y+1}], v[{d}:{d+1}] op_sel:[1,1,0] op_sel_hi:[1,0,1] neg_lo:[1,0,0]")
def cmuls(a, lst):
    for (d, x, y) in lst: cmul1(a, d, x, y)
    for (d, x, y) in lst: cmul2(a, d, x, y)

class LQ:
    def __init__(self, a): self.a = a; self.q = []
    def issue(self, ins, tag): self.a(ins); self.q.append(tag)
    def wait(self, tags):
        idx = -1
        for i, t in enumerate(self.q):
            if t in tags: idx = i
        if idx < 0: return
        n = len(self.q) - 1 - idx
        self.q = self.q[idx+1:]
        self.a(f"s_waitcnt lgkmcnt({min(n, 15)})")

def ssm_setup(a):
    srd(a, 48, P_LAR, D*N*2); srd(a, 52, P_AIM, D*N*2); srd(a, 56, P_CR, D*N*2); srd(a, 60, P_CI, D*N*2)
    a("s_mov_b32 s66, 4096"); a("s_mov_b32 s67, 0x00020000")
    srd(a, 80, P_LDT, D*2); srd(a, 84, P_DSK, D*2)
    srd(a, 88, P_WS, SZ_AT, add=WS_AT)
    a(f"s_mov_b32 s70, {f32(L2E_HI)}")
    a(f"s_mov_b32 s71, {f32(L2E_LO)}")
    a(f"s_mov_b32 s72, {f32(math.log(2.0))}")
    a(f"s_mov_b32 s73, {f32(1.0/(2*math.pi))}")
    a(f"s_and_b32 s4, s{S_WAVE}, 1")
    a("s_lshl_b32 s5, s4, 6")
    a("v_add_u32 v1, s5, v0")
    a("v_lshlrev_b32 v3, 2, v1")
    a("v_lshlrev_b32 v1, 1, v1")
    a("v_mov_b32 v2, 0")

def load_params(a):
    a("s_lshl_b32 s5, s74, 8")
    a(f"buffer_load_ushort v{PR}, v1, s[48:51], s5 offen")
    a(f"buffer_load_ushort v{PR+1}, v1, s[52:55], s5 offen")
    a(f"buffer_load_ushort v{PR+2}, v1, s[56:59], s5 offen")
    a(f"buffer_load_ushort v{PR+3}, v1, s[60:63], s5 offen")
    a("s_lshl_b32 s5, s74, 1")
    a(f"buffer_load_ushort v{PR+4}, v2, s[80:83], s5 offen")
    a(f"buffer_load_ushort v{PR+5}, v2, s[84:87], s5 offen")

def load_u(a, ld_flags):
    assert WS_UT == 0
    a("s_lshl_b32 s5, s74, 12")
    a(f"s_add_u32 s64, s{P_WS}, s5")
    a(f"s_addc_u32 s65, s{P_WS+1}, 0")
    a(f"buffer_load_dwordx4 v[{UD}:{UD+3}], v8, s[64:67], 0 offen {ld_flags}")
    a(f"buffer_load_dwordx4 v[{UD+4}:{UD+7}], v8, s[64:67], 0 offen offset:16 {ld_flags}")

def ssm_setup2(a):
    a(f"s_cmp_ge_u32 s{S_WAVE}, 2")
    a(f"s_mov_b32 s6, {TB_}")
    a(f"s_cselect_b32 s5, {TA_}, s6")
    a("v_add_u32 v3, s5, v3")
    a("v_and_b32 v22, 31, v0")
    a("v_lshrrev_b32 v23, 5, v0")
    a("v_mul_u32_u24 v4, 528, v22")
    a("v_lshl_add_u32 v4, v23, 4, v4")
    a("s_lshl_b32 s5, s4, 8")
    a("v_add_u32 v4, s5, v4")
    a(f"v_add_u32 v5, {TB_}, v4")
    a(f"v_add_u32 v4, {TA_}, v4")
    a("v_and_b32 v24, 7, v0")
    a("v_mul_u32_u24 v6, 4160, v24")
    a("v_bfe_u32 v24, v0, 3, 2")
    a("v_sub_u32 v24, v23, v24")
    a("v_lshlrev_b32 v24, 4, v24")
    a("v_add_u32 v6, v6, v24")
    a(f"v_add_u32 v6, {UC+48}, v6")
    a(f"v_mul_u32_u24 v7, {PS}, v23")
    a("v_lshl_add_u32 v7, v22, 4, v7")
    if KP: a(f"v_add_u32 v7, {KP}, v7")
    a(f"v_add_u32 v9, {UC}, v8")
    a("v_and_b32 v24, 1, v0")
    a(f"v_mul_u32_u24 v17, {PS}, v24")
    a("v_lshrrev_b32 v24, 1, v22")
    a("v_lshl_add_u32 v17, v24, 4, v17")
    a(f"v_add_u32 v17, {KP+512}, v17")
    a("v_lshlrev_b32 v18, 6, v22")
    a("v_lshl_add_u32 v18, v23, 4, v18")
    a("v_lshlrev_b32 v24, 5, v22")
    a("v_lshl_add_u32 v24, v23, 3, v24")
    a(f"v_sub_u32 v19, {UC+7*4160+4088-3*1024-16}, v24")
    a("v_lshlrev_b32 v20, 5, v22")
    a("v_lshl_add_u32 v20, v23, 4, v20")
    a("v_lshlrev_b32 v21, 4, v0")
    a(f"v_mul_u32_u24 v24, {PS}, v23")
    a("v_lshl_add_u32 v24, v22, 4, v24")
    if KP: a(f"v_add_u32 v24, {KP}, v24")
    for i in range(4): a(f"v_mov_b32 v{28+i}, 0")
    a("ds_write_b128 v24, v[28:31]")
    a("v_and_b32 v24, 7, v0")
    a("v_mul_u32_u24 v24, 4160, v24")
    a(f"v_add_u32 v24, {UC+4096}, v24")
    a("ds_write_b128 v24, v[28:31]")
    a("s_mov_b32 s92, 1"); a("s_mov_b32 s93, 1")
    a("s_mov_b32 s94, 0"); a("s_mov_b32 s95, -1")
    a("s_mov_b32 s96, 0xaaaaaaaa"); a("s_mov_b32 s97, 0xaaaaaaaa")

def build_copies(a):
    d = UD
    Dp, E, Ep = 52, 58, 64
    for k in range(6): a(f"v_mov_b32 v{Dp+k}, v{d+1+k}")
    for k in range(6): a(f"v_alignbit_b32 v{E+k}, v{d+k+1}, v{d+k}, 16")
    for k in range(6): a(f"v_alignbit_b32 v{Ep+k}, v{d+k+2}, v{d+k+1}, 16")
    src = {7: d, 3: d+2, 5: Dp, 1: Dp+2, 6: E, 2: E+2, 4: Ep, 0: Ep+2}
    for i0 in (7, 3, 5, 1, 6, 2, 4, 0):
        a(f"ds_write_b128 v9, v[{src[i0]}:{src[i0]+3}] offset:{i0*4160}")

def role_SSM(a, s_ch0, s_nch, st_flags="", ld_flags="", wait_ut=None, after_tables_first=None, ts=None, pfx="ssm"):
    def stamp():
        if ts: ts.stamp()
    a(f"s_add_u32 s75, s{s_ch0}, s{s_nch}")
    a("s_mov_b32 s78, 1")
    a.label(f"{pfx}_loop")
    stamp()
    a("s_waitcnt vmcnt(2)" if wait_ut is None else "s_waitcnt vmcnt(0)")
    for r in range(PR, PR+6): a(f"v_lshlrev_b32 v{r}, 16, v{r}")
    exp_acc(a, DT, PR+4, 52, 53); bf16r(a, DT, DT)
    exp_acc(a, 39, PR, 54, 55); bf16r(a, 39, 39)
    a(f"v_mul_f32 v39, v39, v{DT}")
    a("v_mul_f32 v39, s70, v39")
    a(f"v_sub_f32 v{RHO}, 0, v39")
    a(f"v_mul_f32 v{TH}, v{PR+1}, v{DT}")
    a(f"v_mul_f32 v{TH}, s73, v{TH}")
    a(f"v_mov_b32 v{DSK}, v{PR+5}")
    stamp()
    labA = a.newlabel(f"{pfx}_A"); labT = a.newlabel(f"{pfx}_Tdone")
    a(f"s_cmp_ge_u32 s{S_WAVE}, 2")
    a(f"s_cbranch_scc1 {labA}")
    def wr_many(lst, neg):
        for i, (row, reg) in enumerate(lst):
            a(f"v_cvt_pk_f16_f32 v{100+i}, v{reg}, {'-' if neg else ''}v{reg+1}")
        for i, (row, reg) in enumerate(lst):
            a(f"ds_write_b32 v3, v{100+i} offset:{row*528}")
    Q = [52, 54, 56, 58]; P = 60
    a(f"v_mov_b32 v{Q[0]}, 1.0"); a(f"v_mov_b32 v{Q[0]+1}, 0")
    cexp_multi(a, [(Q[1], 8, 70), (P, 32, 73), (Q[2], 16, 76), (Q[3], 24, 79)])
    cur = list(Q); alt = [62, 64, 66, 68]
    for u in range(8):
        if u < 7: cmuls(a, [(alt[v], cur[v], P) for v in range(4)])
        wr_many([(4*u+v, cur[v]) for v in range(4)], False)
        cur, alt = alt, cur
    a(f"s_branch {labT}")
    a.label(labA)
    a(f"v_mul_f32 v52, v{PR+2}, v{DT}"); a(f"v_mul_f32 v53, v{PR+3}, v{DT}")
    a("v_add_f32 v52, v52, v52"); a("v_add_f32 v53, v53, v53")
    a("v_max_f32 v54, |v52|, |v53|")
    E1, E2, E4, E8, E256 = 56, 58, 60, 62, 64
    cexp_multi(a, [(E1, 1, 70), (E8, 8, 73), (E256, 256, 76), (E2, 2, 79), (E4, 4, 82)])
    for sh in (8, 4, 2, 1):
        a.nop(1)
        a(f"v_max_f32_dpp v54, v54, v54 row_ror:{sh} row_mask:0xf bank_mask:0xf")
        a.nop(1)
    for i in range(4): a(f"v_readlane_b32 s{8+i}, v54, {16*i}")
    a.nop(2)
    a("s_max_u32 s8, s8, s9"); a("s_max_u32 s10, s10, s11"); a("s_max_u32 s8, s8, s10")
    a("s_lshr_b32 s8, s8, 23")
    a("s_min_u32 s8, s8, 252")
    a("s_sub_u32 s9, 253, s8"); a("s_lshl_b32 s9, s9, 23")
    a("s_add_u32 s10, s8, 1"); a("s_lshl_b32 s10, s10, 23")
    a("v_mul_f32 v52, s9, v52"); a("v_mul_f32 v53, s9, v53")
    a("v_mov_b32 v54, s10")
    a(f"s_and_b32 s11, s{S_WAVE}, 1"); a("s_lshl_b32 s11, s11, 2"); a(f"s_add_u32 s11, s11, {SC}")
    a("v_mov_b32 v55, s11")
    a("ds_write_b32 v55, v54")
    X = {0: 52}
    pool = [66 + 2*i for i in range(14)]
    pi = [0]
    def stage(lst):
        ops = []
        for (p, src, mul) in lst:
            r = pool[pi[0] % len(pool)]; pi[0] += 1
            ops.append((r, X[src], mul)); X[p] = r
        cmuls(a, ops)
        wr_many([(ROW_OF[p], X[p]) for (p, _, _) in lst], True)
    wr_many([(0, 52)], True)
    stage([(1, 0, E1), (2, 0, E2), (4, 0, E4), (256, 0, E256)])
    stage([(3, 2, E1), (5, 4, E1), (6, 4, E2), (512, 256, E256)])
    stage([(7, 6, E1), (258, 256, E2), (260, 256, E4), (264, 256, E8)])
    stage([(262, 260, E2), (768, 512, E256)])
    stage([(516, 512, E4), (520, 512, E8), (1024, 768, E256)])
    stage([(772, 768, E4), (776, 768, E8), (1032, 1024, E8), (1280, 1024, E256)])
    stage([(1288, 1280, E8), (1536, 1280, E256)])
    stage([(1544, 1536, E8), (1792, 1536, E256)])
    stage([(1800, 1792, E8)])
    a.label(labT)
    stamp()
    if after_tables_first:
        lab = a.newlabel(f"{pfx}_nf")
        a("s_cmp_eq_u32 s78, 0")
        a(f"s_cbranch_scc1 {lab}")
        after_tables_first(a)
        load_u(a, ld_flags)
        a.label(lab)
    a("s_mov_b32 s78, 0")
    a("s_waitcnt vmcnt(0)")
    build_copies(a)
    a("s_waitcnt lgkmcnt(0)")
    a("s_barrier")
    stamp()
    labK = a.newlabel(f"{pfx}_K")
    a(f"s_cmp_ge_u32 s{S_WAVE}, 2")
    a(f"s_cbranch_scc1 {labK}")
    KD = 64
    a(f"s_lshl_b32 s11, s{S_WAVE}, 2"); a(f"s_add_u32 s11, s11, {SC}")
    a("v_mov_b32 v53, s11")
    lq = LQ(a)
    lq.issue("ds_read_b32 v52, v53", "sc")
    def kread(s):
        lq.issue(f"ds_read_b128 v[{80+8*(s%4)}:{83+8*(s%4)}], v4 offset:{32*s}", ("k", s))
        lq.issue(f"ds_read_b128 v[{84+8*(s%4)}:{87+8*(s%4)}], v5 offset:{32*s}", ("k", s))
    for s in range(4): kread(s)
    for i in range(16): a(f"v_mov_b32 v{KD+i}, 0")
    a.nop(1)
    for s in range(8):
        lq.wait([("k", s)])
        a(f"v_mfma_f32_32x32x16_f16 v[{KD}:{KD+15}], v[{80+8*(s%4)}:{83+8*(s%4)}], v[{84+8*(s%4)}:{87+8*(s%4)}], v[{KD}:{KD+15}]")
        if s + 4 < 8: kread(s+4)
    a.nop(12)
    for i in range(0, 16, 2): a(f"v_pk_mul_f32 v[{KD+i}:{KD+i+1}], v[{KD+i}:{KD+i+1}], v[52:53] op_sel_hi:[1,0]")
    labx = a.newlabel(f"{pfx}_x1"); labx2 = a.newlabel(f"{pfx}_x2")
    a(f"s_cmp_eq_u32 s{S_WAVE}, 1")
    a(f"s_cbranch_scc1 {labx}")
    a(f"ds_write_b128 v21, v[{KD+8}:{KD+11}] offset:{XX}")
    a(f"ds_write_b128 v21, v[{KD+12}:{KD+15}] offset:{XX+1024}")
    a(f"s_branch {labx2}")
    a.label(labx)
    a(f"ds_write_b128 v21, v[{KD}:{KD+3}] offset:{XX+2048}")
    a(f"ds_write_b128 v21, v[{KD+4}:{KD+7}] offset:{XX+3072}")
    a.label(labx2)
    a.label(labK)
    a("s_add_u32 s74, s74, 1")
    a("s_cmp_lt_u32 s74, s75")
    labnp = a.newlabel(f"{pfx}_np")
    a(f"s_cbranch_scc0 {labnp}")
    load_params(a)
    load_u(a, ld_flags)
    a.label(labnp)
    a("s_waitcnt lgkmcnt(0)")
    a("s_barrier")
    stamp()
    labK2 = a.newlabel(f"{pfx}_K2"); labw1 = a.newlabel(f"{pfx}_w1")
    a(f"s_cmp_ge_u32 s{S_WAVE}, 2")
    a(f"s_cbranch_scc1 {labK2}")
    a(f"s_cmp_eq_u32 s{S_WAVE}, 1")
    a(f"s_cbranch_scc1 {labw1}")
    a(f"ds_read_b128 v[80:83], v21 offset:{XX+2048}")
    a(f"ds_read_b128 v[84:87], v21 offset:{XX+3072}")
    a("v_lshrrev_b32 v92, 5, v0")
    a("v_lshl_add_u32 v92, v92, 8, v17")
    a("s_waitcnt lgkmcnt(0)")
    for i in range(0, 8, 2): a(f"v_pk_add_f32 v[{KD+i}:{KD+i+1}], v[{KD+i}:{KD+i+1}], v[{80+i}:{81+i}]")
    r = [KD+i for i in range(8)]
    M = "s[94:95]"
    for (dst, f0, f1) in ((80,1,0),(81,2,1),(82,3,2),(83,4,2),(84,5,2),(85,6,3),(86,7,4)):
        a(f"v_cndmask_b32 v{dst}, v{r[f0]}, v{r[f1]}, {M}")
    a(f"v_cvt_pk_bf16_f32 v88, v{r[0]}, v80")
    a("v_cvt_pk_bf16_f32 v89, v81, v82")
    a("v_cvt_pk_bf16_f32 v90, v83, v84")
    a("v_cvt_pk_bf16_f32 v91, v85, v86")
    a("ds_write_b128 v92, v[88:91]")
    a(f"v_cvt_pk_bf16_f32 v96, v{r[5]}, v{r[5]}")
    a(f"v_cvt_pk_bf16_f32 v97, v{r[5]}, v{r[6]}")
    a(f"v_cvt_pk_bf16_f32 v98, v{r[6]}, v{r[6]}")
    a(f"v_cvt_pk_bf16_f32 v99, v{r[7]}, v{r[7]}")
    a("s_mov_b64 exec, s[94:95]")
    a("ds_write_b128 v17, v[96:99] offset:512")
    a("s_mov_b64 exec, -1")
    a(f"s_branch {labK2}")
    a.label(labw1)
    a(f"ds_read_b128 v[80:83], v21 offset:{XX}")
    a(f"ds_read_b128 v[84:87], v21 offset:{XX+1024}")
    a("s_waitcnt lgkmcnt(0)")
    for i in range(0, 8, 2): a(f"v_pk_add_f32 v[{KD+8+i}:{KD+9+i}], v[{KD+8+i}:{KD+9+i}], v[{80+i}:{81+i}]")
    r = [KD+8+i for i in range(8)]
    for h in range(4):
        z0, z1 = r[2*h], r[2*h+1]
        o = 80 + 4*h
        a(f"v_cndmask_b32 v96, v{z0}, v{z1}, s[96:97]")
        a(f"v_cvt_pk_bf16_f32 v{o}, v{z0}, v{z0}")
        a(f"v_cvt_pk_bf16_f32 v{o+2}, v96, v{z1}")
        a(f"v_cvt_pk_bf16_f32 v{o+3}, v{z1}, v{z1}")
        a(f"v_mov_b32 v{o+1}, v{o}")
    a(f"v_cvt_pk_bf16_f32 v96, v{r[0]}, v{r[0]}")
    a(f"v_cvt_pk_bf16_f32 v97, v{r[0]}, v{r[1]}")
    a(f"v_cvt_pk_bf16_f32 v98, v{r[1]}, v{r[1]}")
    a(f"v_cvt_pk_bf16_f32 v99, v{r[2]}, v{r[2]}")
    a("s_mov_b64 exec, s[94:95]")
    a("ds_write_b128 v17, v[96:99] offset:768")
    a("s_not_b64 exec, exec")
    for h in range(4):
        a(f"ds_write_b128 v17, v[{80+4*h}:{83+4*h}] offset:{1024+256*h}")
    a("s_mov_b64 exec, -1")
    a.label(labK2)
    a("s_waitcnt lgkmcnt(0)")
    a("s_barrier")
    stamp()
    units = {0: [(3,0,0),(3,1,0),(0,0,1)], 1: [(3,2,0),(3,3,0)], 2: [(2,0,0),(2,1,0),(2,2,0)], 3: [(1,0,0),(1,1,0)]}
    ACCS = [64, 80]
    labs = [a.newlabel(f"{pfx}_cv{w}") for w in range(4)]
    labE = a.newlabel(f"{pfx}_cvdone")
    for w in range(1, 4):
        a(f"s_cmp_eq_u32 s{S_WAVE}, {w}")
        a(f"s_cbranch_scc1 {labs[w]}")
    for w in range(4):
        a.label(labs[w])
        un = units[w]
        order = []
        for (q, r, ai) in un:
            for key in (("A", r), ("B", q-r)):
                if key not in order: order.append(key)
        slot = {key: i for i, key in enumerate(order)}
        def reg(key, k): return [96, 120][k] + 4*slot[key]
        def rd(key, dl):
            k = dl & 1
            if key[0] == "A": return f"ds_read_b128 v[{reg(key,k)}:{reg(key,k)+3}], v6 offset:{64*(63-(dl+16*key[1]))}"
            return f"ds_read_b128 v[{reg(key,k)}:{reg(key,k)+3}], v7 offset:{(32*key[1] - 2*dl + 32)*16}"
        lq = LQ(a)
        for key in order: lq.issue(rd(key, 0), (key, 0))
        for i in range(32 if w == 0 else 16): a(f"v_mov_b32 v{64+i}, 0")
        a.nop(1)
        for dl in range(16):
            k = dl & 1
            done = set()
            for ui, (q, r, ai) in enumerate(un):
                c = ACCS[ai]; ka = ("A", r); kb = ("B", q-r)
                lq.wait([(ka, dl), (kb, dl)])
                a(f"v_mfma_f32_32x32x16_bf16 v[{c}:{c+15}], v[{reg(ka,k)}:{reg(ka,k)+3}], v[{reg(kb,k)}:{reg(kb,k)+3}], v[{c}:{c+15}]")
                if dl + 1 < 16:
                    for key in (ka, kb):
                        if key not in done:
                            done.add(key); lq.issue(rd(key, dl+1), (key, dl+1))
        qf = {0: 0, 1: 3, 2: 2, 3: 1}[w]
        a(f"ds_read_b64 v[100:101], v19 offset:{(3-qf)*1024 + 16}")
        a(f"ds_read_b64 v[102:103], v19 offset:{(3-qf)*1024}")
        a(f"s_mov_b32 s8, {qf}")
        a.nop(11)
        if w == 0:
            a(f"ds_write_b128 v18, v[72:75] offset:{YB1 + 3*2048 + 64}")
            a(f"ds_write_b128 v18, v[76:79] offset:{YB1 + 3*2048 + 64 + 32}")
            a(f"ds_write_b128 v18, v[64:67] offset:{YB0A}")
            a(f"ds_write_b128 v18, v[68:71] offset:{YB0A + 32}")
            a(f"ds_write_b128 v18, v[88:91] offset:{YB1 + 64}")
            a(f"ds_write_b128 v18, v[92:95] offset:{YB1 + 64 + 32}")
            for i in range(0, 8, 2): a(f"v_pk_mov_b32 v[{64+i}:{65+i}], v[{80+i}:{81+i}], v[{80+i}:{81+i}] op_sel:[0,1]")
        elif w == 1:
            a(f"ds_write_b128 v18, v[72:75] offset:{YB1B + 64}")
            a(f"ds_write_b128 v18, v[76:79] offset:{YB1B + 64 + 32}")
        else:
            q = 2 if w == 2 else 1
            a(f"ds_write_b128 v18, v[72:75] offset:{YB1 + q*2048 + 64}")
            a(f"ds_write_b128 v18, v[76:79] offset:{YB1 + q*2048 + 64 + 32}")
        a("s_waitcnt lgkmcnt(0)")
        a("s_barrier")
        a(f"ds_read_b128 v[80:83], v18 offset:{YB1 + qf*2048}")
        a(f"ds_read_b128 v[84:87], v18 offset:{YB1 + qf*2048 + 32}")
        if w == 1:
            a(f"ds_read_b128 v[88:91], v18 offset:{YB1B}")
            a(f"ds_read_b128 v[92:95], v18 offset:{YB1B + 32}")
            a(f"ds_read_b128 v[104:107], v18 offset:{YB0A}")
            a(f"ds_read_b128 v[108:111], v18 offset:{YB0A + 32}")
        a("s_waitcnt lgkmcnt(0)")
        if w == 0:
            for i in range(8): a(f"v_cndmask_b32 v{80+i}, v{80+i}, 0, s[92:93]")
        if w == 1:
            for i in range(8): a(f"v_cndmask_b32 v{88+i}, v{88+i}, 0, s[92:93]")
            for i in range(0, 8, 2): a(f"v_pk_add_f32 v[{64+i}:{65+i}], v[{64+i}:{65+i}], v[{104+i}:{105+i}]")
            for i in range(0, 8, 2): a(f"v_pk_add_f32 v[{80+i}:{81+i}], v[{80+i}:{81+i}], v[{88+i}:{89+i}]")
        for i in range(0, 8, 2): a(f"v_pk_add_f32 v[{64+i}:{65+i}], v[{64+i}:{65+i}], v[{80+i}:{81+i}]")
        if w < 3: a(f"s_branch {labE}")
    a.label(labE)
    stamp()
    a("s_barrier")
    a("s_mov_b32 s11, 0xffff0000")
    a(f"v_mov_b32 v{DSK+1}, v{DSK}")
    for g in range(2):
        ur = 100 + 2*g; t = 80 + 8*g
        a(f"v_and_b32 v{t}, s11, v{ur+1}")
        a(f"v_lshlrev_b32 v{t+1}, 16, v{ur+1}")
        a(f"v_and_b32 v{t+2}, s11, v{ur}")
        a(f"v_lshlrev_b32 v{t+3}, 16, v{ur}")
        a(f"v_pk_mul_f32 v[{t}:{t+1}], v[{t}:{t+1}], v[{DSK}:{DSK+1}]")
        a(f"v_pk_mul_f32 v[{t+2}:{t+3}], v[{t+2}:{t+3}], v[{DSK}:{DSK+1}]")
        y = 64 + 4*g
        a(f"v_cvt_pk_bf16_f32 v{t+4}, v{t}, v{t+1}")
        a(f"v_cvt_pk_bf16_f32 v{t+5}, v{t+2}, v{t+3}")
        a(f"v_cvt_pk_bf16_f32 v{t+6}, v{y}, v{y+1}")
        a(f"v_cvt_pk_bf16_f32 v{t+7}, v{y+2}, v{y+3}")
        a(f"v_lshlrev_b32 v{t}, 16, v{t+4}"); a(f"v_and_b32 v{t+1}, s11, v{t+4}")
        a(f"v_lshlrev_b32 v{t+2}, 16, v{t+5}"); a(f"v_and_b32 v{t+3}, s11, v{t+5}")
        a(f"v_lshlrev_b32 v{y}, 16, v{t+6}"); a(f"v_and_b32 v{y+1}, s11, v{t+6}")
        a(f"v_lshlrev_b32 v{y+2}, 16, v{t+7}"); a(f"v_and_b32 v{y+3}, s11, v{t+7}")
        a(f"v_pk_add_f32 v[{t}:{t+1}], v[{y}:{y+1}], v[{t}:{t+1}]")
        a(f"v_pk_add_f32 v[{t+2}:{t+3}], v[{y+2}:{y+3}], v[{t+2}:{t+3}]")
        a(f"v_cvt_pk_bf16_f32 v{96+2*g}, v{t}, v{t+1}")
        a(f"v_cvt_pk_bf16_f32 v{97+2*g}, v{t+2}, v{t+3}")
    a("s_sub_u32 s9, s74, 1")
    a("s_lshl_b32 s9, s9, 12")
    a("s_lshl_b32 s8, s8, 10")
    a("s_add_u32 s9, s9, s8")
    a("v_permlane32_swap_b32 v96, v98")
    a("v_permlane32_swap_b32 v97, v99")
    a.nop(1)
    a(f"buffer_store_dwordx4 v[96:99], v20, s[88:91], s9 offen {st_flags}")
    stamp()
    a("s_cmp_lt_u32 s74, s75")
    a(f"s_cbranch_scc1 {pfx}_loop")

def ssm_dispatch(a, s_j):
    a(f"s_lshr_b32 s10, s{s_j}, 5")
    a(f"s_and_b32 s11, s{s_j}, 31")
    a("s_mul_i32 s14, s10, 80")
    a("s_cmp_lt_u32 s11, 16")
    a("s_cselect_b32 s15, 3, 2")
    a("s_mul_i32 s12, s11, 3")
    a("s_lshl_b32 s13, s11, 1")
    a("s_add_u32 s13, s13, 16")
    a("s_cmp_lt_u32 s11, 16")
    a("s_cselect_b32 s12, s12, s13")
    a("s_add_u32 s14, s14, s12")

def s_prologue(a):
    ssm_setup(a)
    a("s_mov_b32 s74, s14")
    a(f"s_lshl_b32 s5, s{S_WAVE}, 6")
    a("v_add_u32 v8, s5, v0")
    a("v_lshlrev_b32 v8, 4, v8")
    load_params(a)
```

```python
import os, sys
from gen import *
import g1v2, g2v2, ssm2

F_EPOCH = 0x0
F_FT = 0x100
F_FW = 0x600
F_FH = 0x800
F_FA = 0x1000
F_FG = 0x1400
S_EP = 101
SC1 = "sc1"
SPIN_MAX = int(os.environ.get('SPIN', 400000))

def flags_srd(a):
    srd(a, 12, P_WS, 0x2000, add=WS_FLAG)

def get_epoch(a, vt):
    srd(a, 12, P_DBG, 256)
    lab = a.newlabel("ep"); done = a.newlabel("epd")
    a(f"v_mov_b32 v{vt+1}, 0")
    a(f"s_mov_b32 s10, {SPIN_MAX}")
    a.label(lab)
    a(f"buffer_load_dword v{vt}, v{vt+1}, s[12:15], 0 offen sc1")
    a("s_waitcnt vmcnt(0)")
    a(f"v_readfirstlane_b32 s{S_EP}, v{vt}")
    a("s_sub_u32 s10, s10, 1")
    a("s_cmp_eq_u32 s10, 0")
    a(f"s_cbranch_scc1 {done}")
    a(f"s_cmp_lg_u32 s{S_EP}, 0")
    a(f"s_cbranch_scc1 {done}")
    a("s_sleep 1")
    a(f"s_branch {lab}")
    a.label(done)

def publish_epoch(a, vt):
    flags_srd(a)
    a(f"v_mov_b32 v{vt+1}, 0")
    a(f"buffer_load_dword v{vt}, v{vt+1}, s[12:15], 0 offen offset:{F_EPOCH} sc1")
    a("s_waitcnt vmcnt(0)")
    a(f"v_add_u32 v{vt}, 1, v{vt}")
    a(f"v_or_b32 v{vt}, 0x80000000, v{vt}")
    a("s_mov_b64 exec, 1")
    a(f"buffer_store_dword v{vt}, v{vt+1}, s[12:15], 0 offen offset:{F_EPOCH} sc1")
    srd(a, 12, P_DBG, 256)
    a(f"buffer_store_dword v{vt}, v{vt+1}, s[12:15], 0 offen sc1")
    a("s_mov_b64 exec, -1")

def signal(a, s_off, vt):
    a("s_waitcnt vmcnt(0)")
    a("s_barrier")
    lab = a.newlabel("sig")
    a(f"s_cmp_lg_u32 s{S_WAVE}, 0")
    a(f"s_cbranch_scc1 {lab}")
    flags_srd(a)
    a(f"v_mov_b32 v{vt}, s{S_EP}")
    a(f"v_mov_b32 v{vt+1}, 0")
    a("s_mov_b64 exec, 1")
    a(f"buffer_store_dword v{vt}, v{vt+1}, s[12:15], s{s_off} offen sc1")
    a("s_mov_b64 exec, -1")
    a.label(lab)

POLL_ID = [0]
def poll(a, items, vt, barrier=True):
    lab = a.newlabel("pollw")
    if barrier:
        a(f"s_cmp_lg_u32 s{S_WAVE}, 0")
        a(f"s_cbranch_scc1 {lab}")
    flags_srd(a)
    a(f"v_lshlrev_b32 v{vt+1}, 2, v0")
    for (s_off, n) in items:
        l2 = a.newlabel("poll"); d2 = a.newlabel("polld")
        a(f"s_mov_b32 s10, {SPIN_MAX}")
        mask = (1 << n) - 1
        a.label(l2)
        a(f"buffer_load_dword v{vt}, v{vt+1}, s[12:15], s{s_off} offen sc1")
        a("s_waitcnt vmcnt(0)")
        a(f"v_cmp_eq_u32 vcc, s{S_EP}, v{vt}")
        a("s_sub_u32 s10, s10, 1")
        a("s_cmp_eq_u32 s10, 0")
        to = a.newlabel("pollto")
        a(f"s_cbranch_scc1 {to}")
        a(f"s_and_b32 s11, vcc_lo, 0x{mask:x}")
        a(f"s_cmp_eq_u32 s11, 0x{mask:x}")
        a(f"s_cbranch_scc1 {d2}")
        a("s_sleep 1")
        a(f"s_branch {l2}")
        a.label(to)
        if os.environ.get("DBGPOLL") == "1":
            POLL_ID[0] += 1
            srd(a, 12, P_DBG, 256)
            a(f"v_mov_b32 v{vt+1}, 0")
            a(f"v_mov_b32 v{vt}, s2")
            a(f"buffer_store_dword v{vt}, v{vt+1}, s[12:15], 0 offen offset:{16*POLL_ID[0]}")
            a(f"v_mov_b32 v{vt}, vcc_lo")
            a(f"buffer_store_dword v{vt}, v{vt+1}, s[12:15], 0 offen offset:{16*POLL_ID[0]+4}")
            flags_srd(a)
            a(f"v_lshlrev_b32 v{vt+1}, 2, v0")
            a(f"buffer_load_dword v{vt}, v{vt+1}, s[12:15], s{s_off} offen sc1")
            a(f"buffer_load_dword v{vt+2}, v{vt+1}, s[12:15], s{s_off} offen sc0 sc1")
            a("s_waitcnt vmcnt(0)")
            srd(a, 12, P_WS, 0x100000, add=0x1200000)
            a("s_lshl_b32 s10, s2, 10")
            a(f"buffer_store_dword v{vt}, v{vt+1}, s[12:15], s10 offen")
            a(f"buffer_store_dword v{vt+2}, v{vt+1}, s[12:15], s10 offen offset:256")
            a(f"v_mov_b32 v{vt}, s{s_off}")
            a(f"buffer_store_dword v{vt}, v{vt+1}, s[12:15], s10 offen offset:512")
            a(f"v_mov_b32 v{vt}, s{S_EP}")
            a(f"buffer_store_dword v{vt}, v{vt+1}, s[12:15], s10 offen offset:768")
            a("s_waitcnt vmcnt(0)")
            flags_srd(a)
            a(f"v_lshlrev_b32 v{vt+1}, 2, v0")
        a.label(d2)
    if barrier:
        a.label(lab)
        a("s_barrier")

def k_fused(a):
    name = "gated_mix__ssm_conv_s4d__dense_activation_squared_relu__prompt_kernel"
    prologue(a, name, 223, pf_lanes=24)
    a("s_cmp_ge_u32 s2, 512")
    a("s_cbranch_scc1 fz_end")
    a("s_cmp_ge_u32 s2, 256")
    a("s_cbranch_scc1 fz_G")
    ts = TS(a, 170); ts.stamp(real=True); ts.stamp()
    T_ = ts if ts.on else None
    lab0 = a.newlabel("noep")
    a("s_cmp_lg_u32 s2, 0"); a(f"s_cbranch_scc1 {lab0}")
    a(f"s_cmp_lg_u32 s{S_WAVE}, 0"); a(f"s_cbranch_scc1 {lab0}")
    publish_epoch(a, 4)
    a.label(lab0)
    ssm2.ssm_dispatch(a, 2)
    a("s_mov_b32 s98, s14"); a("s_mov_b32 s99, s15")
    a("s_lshr_b32 s10, s2, 5"); a("s_lshl_b32 s10, s10, 4")
    a("s_and_b32 s11, s2, 31"); a("s_add_u32 s10, s10, s11"); a("s_sub_u32 s79, s10, 16")
    a("s_cmp_lt_u32 s11, 16"); a("s_cselect_b32 s79, 200, s79")
    labw = a.newlabel("now2r")
    a("s_cmp_ge_u32 s79, 108"); a(f"s_cbranch_scc1 {labw}")
    a("s_lshl_b32 s10, s79, 2"); a(f"s_add_u32 s10, s10, s{S_WAVE}")
    role_W2R(a, 10, ssm2.TA_, st_flags=SC1)
    a.label(labw)
    a("s_and_b32 s10, s2, 7"); a("s_lshl_b32 s10, s10, 2")
    a("s_lshr_b32 s11, s2, 3"); a("s_and_b32 s12, s11, 3"); a("s_add_u32 s86, s10, s12")
    a("s_lshr_b32 s87, s11, 2")
    role_T(a, 86, 87, ssm2.UC, ssm2.UC + 12288, st_flags=SC1)
    a("s_barrier")
    a("s_lshl_b32 s68, s87, 7"); a("s_lshl_b32 s10, s86, 2"); a("s_add_u32 s68, s68, s10"); a(f"s_add_u32 s68, s68, {F_FT}")
    a("s_lshl_b32 s69, s79, 2"); a(f"s_add_u32 s69, s69, {F_FW}")
    a("s_mov_b32 s14, s98")
    ssm2.s_prologue(a)
    ssm2.ssm_setup2(a)
    def after_tables(a):
        get_epoch(a, 24)
        a("s_waitcnt vmcnt(0)")
        a("s_barrier")
        lab = a.newlabel("sigT")
        a(f"s_cmp_lg_u32 s{S_WAVE}, 0"); a(f"s_cbranch_scc1 {lab}")
        flags_srd(a)
        a(f"v_mov_b32 v24, s{S_EP}"); a("v_mov_b32 v25, 0")
        a("s_mov_b64 exec, 1")
        a("buffer_store_dword v24, v25, s[12:15], s68 offen sc1")
        l3 = a.newlabel("sigW")
        a("s_cmp_ge_u32 s79, 108"); a(f"s_cbranch_scc1 {l3}")
        a("buffer_store_dword v24, v25, s[12:15], s69 offen sc1")
        a.label(l3)
        a("s_mov_b64 exec, -1")
        a.label(lab)
        a("s_lshr_b32 s9, s2, 5"); a("s_lshl_b32 s9, s9, 7"); a(f"s_add_u32 s9, s9, {F_FT}")
        poll(a, [(9, 32)], 24)
    ssm2.role_SSM(a, 98, 99, st_flags=SC1, ld_flags=SC1, wait_ut=True, after_tables_first=after_tables, ts=T_)
    a("s_lshr_b32 s9, s2, 5"); a("s_lshl_b32 s9, s9, 7"); a("s_and_b32 s10, s2, 31"); a("s_lshl_b32 s10, s10, 2")
    a("s_add_u32 s9, s9, s10"); a(f"s_add_u32 s9, s9, {F_FA}")
    signal(a, 9, 24)
    if ts.on:
        ts.stamp(real=True); ts.flush(base=0x80000)
    a("s_endpgm")
    a.label("fz_G")
    ts = TS(a, 210); ts.stamp(real=True); ts.stamp()
    T_ = ts if ts.on else None
    a("s_and_b32 s92, s2, 7")
    a("s_lshr_b32 s93, s2, 3"); a("s_sub_u32 s93, s93, 32")
    a("s_cmp_ge_u32 s93, 28")
    a("s_cbranch_scc1 fz_gate")
    g1v2.g1_map(a, 92, 93)
    g1v2.role_G1(a, 98, 99, 97, st_flags=SC1, ts=T_)
    get_epoch(a, 24)
    a("s_lshl_b32 s9, s98, 7"); a("s_lshl_b32 s10, s99, 2"); a("s_add_u32 s9, s9, s10"); a(f"s_add_u32 s9, s9, {F_FH}")
    signal(a, 9, 24)
    a("s_branch fz_G2")
    a.label("fz_gate")
    a("s_lshl_b32 s94, s92, 2"); a("s_add_u32 s94, s94, s93"); a("s_sub_u32 s94, s94, 28")
    a("s_lshl_b32 s10, s94, 6"); a(f"s_lshl_b32 s11, s{S_WAVE}, 4"); a("s_add_u32 s10, s10, s11")
    a("s_mov_b32 s95, s10")
    role_gate(a, 95, 4, st_flags=SC1)
    get_epoch(a, 24)
    a("s_lshl_b32 s9, s94, 2"); a(f"s_add_u32 s9, s9, {F_FG}")
    signal(a, 9, 24)
    a.label("fz_G2")
    if T_: ts.stamp()
    g2v2.g2_map(a, 92, 93)
    def wait_w2(a, vm):
        a("s_mul_i32 s95, s99, 27"); a("s_lshr_b32 s95, s95, 1"); a("s_min_u32 s95, s95, 93")
        a("s_lshl_b32 s95, s95, 2"); a(f"s_add_u32 s95, s95, {F_FW}")
        poll(a, [(95, 15)], 126)
        vm.q = []
    def wait_main(a, vm):
        a("s_lshr_b32 s95, s98, 1"); a("s_lshl_b32 s95, s95, 7"); a(f"s_add_u32 s95, s95, {F_FH}")
        poll(a, [(95, 14)], 126)
    def wait_epi(a, vm):
        a("s_lshl_b32 s95, s99, 7"); a(f"s_add_u32 s95, s95, {F_FA}")
        a("s_lshl_b32 s96, s98, 2"); a(f"s_add_u32 s96, s96, {F_FG}")
        poll(a, [(95, 32), (96, 1)], 126)
    g2v2.role_G2(a, 98, 99, 97, ld_flags=SC1, wait_w2=wait_w2, wait_main=wait_main, wait_epi=wait_epi, ts=T_)
    if ts.on:
        a("s_waitcnt vmcnt(0)")
        ts.stamp(); ts.stamp(real=True); ts.flush()
    a.label("fz_end")
    a("s_endpgm")

def build_single(fn):
    name = "gated_mix__ssm_conv_s4d__dense_activation_squared_relu__prompt_kernel"
    s = HEADER + f"; @launch grid=(512,1,1) block=(256,1,1) lds=81920\n"
    s += '.amdgcn_target "amdgcn-amd-amdhsa--gfx950"\n.text\n'
    a = Asm(); k_fused(a)
    s += kernel_header(name) + a.text() + f"{name}_end:\n"
    s += '.section .rodata,"a"\n' + kernel_desc(name, 224)
    open(fn, "w").write(s)

if __name__ == "__main__":
    build_single(sys.argv[1] if len(sys.argv) > 1 else "f1.s")
```
